```python
import torch

def _softmax(x, axis=-1):
    return torch.softmax(x, dim=axis)
def _gelu(x):
    return torch.nn.functional.gelu(x, approximate="tanh")
def _silu(x):
    return torch.nn.functional.silu(x)
def _sigmoid(x):
    return torch.sigmoid(x)
def _layernorm(x, axis=-1, eps=1e-5):
    m = x.mean(dim=axis, keepdim=True)
    v = x.var(dim=axis, keepdim=True, unbiased=False)
    return (x - m) / torch.sqrt(v + eps)
def _scatter_add(tgt, idx, src, axis=0):
    return tgt.clone().index_add_(axis, idx, src)
def _segment_sum(src, seg, n):
    out = torch.zeros((n,) + src.shape[1:], dtype=src.dtype)
    return out.index_add_(0, seg, src)
def _pad(x, pw):
    flat = tuple(v for pair in reversed(pw) for v in pair)
    return torch.nn.functional.pad(x, flat)

kernel_name = 'standalone__mha_softmax__sampling'

def setup_inputs():

    _w = (lambda a: (lambda t: t.to(torch.bfloat16) if t.is_floating_point() else t)(torch.as_tensor(a)))
    B, H, Sq, Sk, D = 8, 32, 4, 2048, 192
    return {
        "q": _w((lambda *s: torch.randn(*s, dtype=torch.bfloat16) * 0.8)(B, H, Sq, D)),
        "k": _w((lambda *s: torch.randn(*s, dtype=torch.bfloat16) * 0.8)(B, H, Sk, D)),
        "v": _w((lambda *s: torch.randn(*s, dtype=torch.bfloat16) * 0.05)(B, H, Sk, D)),
    }

def reference(q, k, v):
    scale = q.shape[-1] ** -0.5
    scores = torch.einsum("bhqd,bhkd->bhqk", q, k) * scale
    p = _softmax(scores, axis=-1)
    return torch.einsum("bhqk,bhkd->bhqd", p, v)
```

```python
import sys, math, struct

NAME = "standalone__mha_softmax__sampling"
HEADER = open("cdna_kernels/%s.s.ref" % NAME).read().split("; Override launch")[0]

def f32bits(x):
    return struct.unpack("<I", struct.pack("<f", x))[0]

def gen(W=8, flags="nt"):
    L = []
    def e(s): L.append("    " + s)
    def lab(s): L.append(s + ":")
    def c(s): L.append("    ; " + s)
    KEYS = 2048 // W
    NT = KEYS // 64
    WB = KEYS * 384
    LDS_ML = W * 3072
    LDS = LDS_ML + 2 * 4 * W * 4
    vKo, vVo, vM0, vM1, vM, vL, vT0 = 1, 2, 3, 4, 5, 6, 7
    QB = 8
    T = 24
    EE, OO = 32, 36
    PF, AH0, AH1 = 40, 44, 48
    F = 52
    TMP = 56
    FR = 64
    ACC = 96
    RING = 144
    NV = 240
    sWave, sKo, sV0, sCnt, sC, sSelLo, sSelHi = 28, 29, 30, 34, 35, 36, 37
    def vr(b, n): return "v[%d:%d]" % (b, b + n - 1)
    def slot(i): return RING + 4 * i

    c("uniform exit for extra workgroups")
    e("s_cmp_ge_u32 s2, 256")
    e("s_cbranch_scc1 L_done")
    e("s_load_dwordx8 s[4:11], s[0:1], 0        ; q, k, v, out")
    c("lane decomposition")
    e("v_lshrrev_b32 v56, 6, v0")
    e("v_and_b32 v0, 63, v0                     ; lane")
    e("v_readfirstlane_b32 s%d, v56" % sWave)
    c("K lane offset: m*768 + g*64 + v*16, m=(l>>2)&3, v=l&3, g=l>>4")
    e("v_bfe_u32 v57, v0, 2, 2")
    e("v_mul_u32_u24 v57, 768, v57")
    e("v_lshrrev_b32 v58, 4, v0")
    e("v_lshlrev_b32 v58, 6, v58")
    e("v_and_b32 v59, 3, v0")
    e("v_lshlrev_b32 v60, 4, v59")
    e("v_add3_u32 v%d, v57, v58, v60" % vKo)
    c("V lane offset: (l>>3)*384 + (l&7)*16")
    e("v_lshrrev_b32 v57, 3, v0")
    e("v_mul_u32_u24 v57, 384, v57")
    e("v_and_b32 v58, 7, v0")
    e("v_lshlrev_b32 v58, 4, v58")
    e("v_add_u32 v%d, v57, v58" % vVo)
    c("Q lane offset: (l&3)*384 + (l>>2)*16")
    e("v_mul_u32_u24 v59, 384, v59")
    e("v_lshrrev_b32 v58, 2, v0")
    e("v_lshlrev_b32 v58, 4, v58")
    e("v_add_u32 v61, v59, v58")
    c("masks on lane bit 2")
    e("v_bfe_i32 v%d, v0, 2, 1                   ; -1 where bit2 set" % vM1)
    e("v_not_b32 v%d, v%d" % (vM0, vM1))
    e("v_mov_b32 v%d, 0xff800000                 ; m = -inf" % vM)
    e("v_mov_b32 v%d, 0" % vL)
    for i in range(8):
        e("v_mov_b32 v%d, 0" % (QB + 4 + i))
    e("s_mov_b32 s%d, 0x%08x" % (sC, f32bits(192 ** -0.5 * math.log2(math.e))))
    e("s_mov_b32 s%d, 0x05040100" % sSelLo)
    e("s_mov_b32 s%d, 0x07060302" % sSelHi)
    e("s_mul_i32 s38, s2, 786432")
    e("s_mul_i32 s39, s%d, %d" % (sWave, WB))
    e("s_add_u32 s38, s38, s39")
    e("s_mul_i32 s40, s2, 1536")
    e("s_waitcnt lgkmcnt(0)")
    c("SRDs")
    e("s_add_u32 s12, s4, s40")
    e("s_addc_u32 s13, s5, 0")
    e("s_mov_b32 s14, 1536")
    e("s_mov_b32 s15, 0x20000")
    e("s_add_u32 s16, s6, s38")
    e("s_addc_u32 s17, s7, 0")
    e("s_mov_b32 s18, %d" % WB)
    e("s_mov_b32 s19, 0x20000")
    e("s_add_u32 s20, s8, s38")
    e("s_addc_u32 s21, s9, 0")
    e("s_mov_b32 s22, %d" % WB)
    e("s_mov_b32 s23, 0x20000")
    e("s_add_u32 s24, s10, s40")
    e("s_addc_u32 s25, s11, 0")
    e("s_mov_b32 s26, 1536")
    e("s_mov_b32 s27, 0x20000")
    c("Q operand loads")
    e("buffer_load_dwordx4 %s, v61, s[12:15], 0 offen" % vr(QB, 4))
    e("buffer_load_dwordx4 %s, v61, s[12:15], 0 offen offset:128" % vr(QB + 12, 4))
    e("s_mov_b32 exec_hi, 0")
    e("buffer_load_dwordx4 %s, v61, s[12:15], 0 offen offset:256" % vr(QB + 4, 4))
    e("s_mov_b32 exec_hi, -1")
    e("v_subrev_u32 v62, 128, v61")
    e("s_mov_b32 exec_lo, 0")
    e("buffer_load_dwordx4 %s, v62, s[12:15], 0 offen" % vr(QB + 8, 4))
    e("s_mov_b32 exec_lo, -1")
    c("first K tile")
    e("s_mov_b32 s%d, 0" % sKo)
    def kload(i):
        j, s = divmod(i, 3)
        e("buffer_load_dwordx4 %s, v%d, s[16:19], s%d offen offset:%d %s" % (vr(slot(i), 4), vKo, sKo, s * 256, flags))
        if s == 2:
            e("s_add_u32 s%d, s%d, 3072" % (sKo, sKo))
    def vload(i):
        s, u = divmod(i, 8)
        e("buffer_load_dwordx4 %s, v%d, s[20:23], s%d offen offset:%d %s" % (vr(slot(i), 4), vVo, sV0 + (u >> 1), (u & 1) * 3072 + s * 128, flags))
    for i in range(24):
        kload(i)
    for i in range(4):
        e("s_mov_b32 s%d, %d" % (sV0 + i, i * 6144))
    for i in range(48):
        e("v_mov_b32 v%d, 0" % (ACC + i))
    e("s_mov_b32 s%d, %d" % (sCnt, NT))

    lab("L_loop")
    c("---- K part: S = K Q^T ----")
    for j in range(8):
        e("s_waitcnt vmcnt(21)")
        e("v_mfma_f32_16x16x32_bf16 %s, %s, %s, 0" % (vr(EE, 4), vr(slot(3 * j), 4), vr(QB, 4)))
        e("v_mfma_f32_16x16x32_bf16 %s, %s, %s, %s" % (vr(EE, 4), vr(slot(3 * j + 1), 4), vr(QB + 4, 4), vr(EE, 4)))
        e("v_mfma_f32_16x16x32_bf16 %s, %s, %s, 0" % (vr(OO, 4), vr(slot(3 * j + 1), 4), vr(QB + 8, 4)))
        e("v_mfma_f32_16x16x32_bf16 %s, %s, %s, %s" % (vr(OO, 4), vr(slot(3 * j + 2), 4), vr(QB + 12, 4), vr(OO, 4)))
        for i in range(3 * j, 3 * j + 3):
            vload(i)
        e("s_nop 5")
        t = T + j
        e("v_add_f32_dpp v%d, v%d, v%d row_shl:4 row_mask:0xf bank_mask:0x1" % (t, EE + 1, EE))
        e("s_nop 1")
        e("v_add_f32_dpp v%d, v%d, v%d row_shl:8 row_mask:0xf bank_mask:0x1" % (t, EE + 2, t))
        e("s_nop 1")
        e("v_add_f32_dpp v%d, v%d, v%d row_shl:12 row_mask:0xf bank_mask:0x1" % (t, EE + 3, t))
        e("s_nop 1")
        e("v_add_f32_dpp v%d, v%d, v%d row_shr:8 row_mask:0xf bank_mask:0x4" % (t, OO, OO + 2))
        e("s_nop 1")
        e("v_add_f32_dpp v%d, v%d, v%d row_shr:4 row_mask:0xf bank_mask:0x4" % (t, OO + 1, t))
        e("s_nop 1")
        e("v_add_f32_dpp v%d, v%d, v%d row_shl:4 row_mask:0xf bank_mask:0x4" % (t, OO + 3, t))
        e("s_nop 1")
        e("v_mov_b32_dpp v%d, v%d row_shr:4 row_mask:0xf bank_mask:0xa" % (t, t))
    for i in range(4):
        e("s_add_u32 s%d, s%d, 24576" % (sV0 + i, sV0 + i))
    c("---- online softmax ----")
    x, y = TMP, TMP + 1
    e("v_max3_f32 v%d, v%d, v%d, v%d" % (x, T, T + 1, T + 2))
    e("v_max3_f32 v%d, v%d, v%d, v%d" % (y, T + 3, T + 4, T + 5))
    e("v_max3_f32 v%d, v%d, v%d, v%d" % (x, x, T + 6, T + 7))
    e("v_max3_f32 v%d, v%d, v%d, v%d" % (x, x, y, vM))
    e("s_nop 1")
    e("v_max_f32_dpp v%d, v%d, v%d row_ror:8 row_mask:0xf bank_mask:0xf" % (x, x, x))
    e("v_mov_b32 v%d, v%d" % (y, x))
    e("s_nop 1")
    e("v_permlane16_swap_b32 v%d, v%d" % (x, y))
    e("s_nop 1")
    e("v_max_f32 v%d, v%d, v%d" % (x, x, y))
    e("v_mov_b32 v%d, v%d" % (y, x))
    e("s_nop 1")
    e("v_permlane32_swap_b32 v%d, v%d" % (x, y))
    e("s_nop 1")
    e("v_max_f32 v%d, v%d, v%d                  ; new max (wave-wide, per q = lane&3)" % (x, x, y))
    e("v_sub_f32 v%d, v%d, v%d" % (y, vM, x))
    e("v_mul_f32 v%d, s%d, v%d" % (y, sC, y))
    e("v_exp_f32 v%d, v%d                       ; f = exp2((m_old-m_new)*c)" % (y, y))
    e("v_mov_b32 v%d, v%d" % (vM, x))
    e("v_mul_f32 v%d, s%d, v%d                  ; m*c" % (x, sC, x))
    for u in range(8):
        e("v_fma_f32 v%d, v%d, s%d, -v%d" % (T + u, T + u, sC, x))
    for u in range(8):
        e("v_exp_f32 v%d, v%d" % (T + u, T + u))
    e("v_mul_f32 v%d, v%d, v%d" % (vL, vL, y))
    for q in range(4):
        e("v_mov_b32_dpp v%d, v%d quad_perm:[%d,%d,%d,%d] row_mask:0xf bank_mask:0xf" % (F + q, y, q, q, q, q))
    for p in range(4):
        e("v_cvt_pk_bf16_f32 v%d, v%d, v%d" % (PF + p, T + 2 * p, T + 2 * p + 1))
    z = TMP + 2
    e("v_add_f32 v%d, v%d, v%d" % (z, T, T + 1))
    e("v_add_f32 v%d, v%d, v%d" % (z + 1, T + 2, T + 3))
    e("v_add_f32 v%d, v%d, v%d" % (z + 2, T + 4, T + 5))
    e("v_add_f32 v%d, v%d, v%d" % (z + 3, T + 6, T + 7))
    e("v_add_f32 v%d, v%d, v%d" % (z, z, z + 1))
    e("v_add_f32 v%d, v%d, v%d" % (z + 2, z + 2, z + 3))
    e("v_add_f32 v%d, v%d, v%d" % (z, z, z + 2))
    e("v_add_f32 v%d, v%d, v%d" % (vL, vL, z))
    for p in range(4):
        e("v_and_b32 v%d, v%d, v%d" % (AH0 + p, PF + p, vM0))
        e("v_and_b32 v%d, v%d, v%d" % (AH1 + p, PF + p, vM1))
    for i in range(48):
        e("v_mul_f32 v%d, v%d, v%d" % (ACC + i, ACC + i, F + (i & 3)))
    c("---- V part: O += P V ----")
    for s in range(3):
        e("s_waitcnt vmcnt(16)")
        for ee in range(8):
            tt, half = ee >> 1, ee & 1
            for p in range(4):
                e("v_perm_b32 v%d, v%d, v%d, s%d" % (FR + 4 * ee + p, slot(8 * s + 2 * p + 1) + tt, slot(8 * s + 2 * p) + tt, sSelHi if half else sSelLo))
        for i in range(8 * s, 8 * s + 8):
            kload(i)
        for ee in range(8):
            a = ACC + 16 * s + 4 * (ee & 3)
            e("v_mfma_f32_16x16x32_bf16 %s, %s, %s, %s" % (vr(a, 4), vr(AH1 if ee >> 2 else AH0, 4), vr(FR + 4 * ee, 4), vr(a, 4)))
    e("s_sub_u32 s%d, s%d, 1" % (sCnt, sCnt))
    e("s_cmp_lg_u32 s%d, 0" % sCnt)
    e("s_cbranch_scc1 L_loop")

    c("---- epilogue: in-wave reduce ----")
    c("lsum over lane bits 3,4,5")
    e("v_add_f32_dpp v%d, v%d, v%d row_ror:8 row_mask:0xf bank_mask:0xf" % (vL, vL, vL))
    e("v_mov_b32 v%d, v%d" % (y, vL))
    e("s_nop 1")
    e("v_permlane16_swap_b32 v%d, v%d" % (vL, y))
    e("s_nop 1")
    e("v_add_f32 v%d, v%d, v%d" % (vL, vL, y))
    e("v_mov_b32 v%d, v%d" % (y, vL))
    e("s_nop 1")
    e("v_permlane32_swap_b32 v%d, v%d" % (vL, y))
    e("s_nop 1")
    e("v_add_f32 v%d, v%d, v%d" % (vL, vL, y))
    c("address for m/l: LDS_ML + ((l&3)*W + wave)*4")
    e("v_and_b32 v%d, 3, v0" % z)
    e("v_lshlrev_b32 v%d, %d, v%d" % (z, int(math.log2(W)) + 2, z))
    e("s_lshl_b32 s38, s%d, 2" % sWave)
    e("v_add_u32 v%d, s38, v%d" % (z, z))
    e("ds_write_b32 v%d, v%d offset:%d" % (z, vM, LDS_ML))
    e("ds_write_b32 v%d, v%d offset:%d" % (z, vL, LDS_ML + 16 * W))
    e("s_nop 4")
    for g in range(12):
        a = ACC + 4 * g
        e("v_permlane32_swap_b32 v%d, v%d" % (a, a + 1))
        e("v_permlane32_swap_b32 v%d, v%d" % (a + 2, a + 3))
    e("s_nop 1")
    for g in range(12):
        a = ACC + 4 * g
        e("v_add_f32_dpp v%d, v%d, v%d row_ror:8 row_mask:0xf bank_mask:0x3" % (FR + g, a + 1, a))
    for g in range(12):
        a = ACC + 4 * g
        e("v_add_f32_dpp v%d, v%d, v%d row_ror:8 row_mask:0xf bank_mask:0xc" % (FR + g, a + 2, a + 3))
    e("s_mul_i32 s38, s%d, 3072" % sWave)
    e("v_lshlrev_b32 v%d, 4, v0" % (z + 1))
    e("v_add_u32 v%d, s38, v%d" % (z + 2, z + 1))
    for s in range(3):
        e("ds_write_b128 v%d, %s offset:%d" % (z + 2, vr(FR + 4 * s, 4), s * 1024))
    e("s_waitcnt lgkmcnt(0)")
    e("s_barrier")
    e("s_cmp_ge_u32 s%d, 3" % sWave)
    e("s_cbranch_scc1 L_done")
    c("---- final combine: wave s (0..2), lane: q = 2*bit3 + bit5, h = bit4, c = l&7 ----")
    e("s_lshl_b32 s38, s%d, 10" % sWave)
    e("v_add_u32 v%d, s38, v%d                  ; s*1024 + l*16" % (z + 2, z + 1))
    PART = ACC
    for w in range(W):
        e("ds_read_b128 %s, v%d offset:%d" % (vr(PART + 4 * w, 4), z + 2, w * 3072))
    e("v_bfe_u32 v8, v0, 3, 1")
    e("v_lshlrev_b32 v8, 1, v8")
    e("v_lshrrev_b32 v9, 5, v0")
    e("v_add_u32 v8, v8, v9                     ; q")
    e("v_lshlrev_b32 v9, %d, v8" % (int(math.log2(W)) + 2))
    MW, LW = FR, FR + 16
    for i in range(W // 4):
        e("ds_read_b128 %s, v9 offset:%d" % (vr(MW + 4 * i, 4), LDS_ML + 16 * i))
    for i in range(W // 4):
        e("ds_read_b128 %s, v9 offset:%d" % (vr(LW + 4 * i, 4), LDS_ML + 16 * W + 16 * i))
    c("output offset = q*384 + (8s+c)*16 + h*8")
    e("v_mul_u32_u24 v10, 384, v8")
    e("v_and_b32 v11, 7, v0")
    e("v_lshlrev_b32 v11, 4, v11")
    e("v_bfe_u32 v12, v0, 4, 1")
    e("v_lshlrev_b32 v12, 3, v12")
    e("v_add3_u32 v10, v10, v11, v12")
    e("s_lshl_b32 s38, s%d, 7" % sWave)
    e("s_waitcnt lgkmcnt(0)")
    e("v_max_f32 v13, v%d, v%d" % (MW, MW + 1))
    for w in range(2, W, 2):
        e("v_max3_f32 v13, v13, v%d, v%d" % (MW + w, MW + w + 1))
    for w in range(W):
        e("v_sub_f32 v%d, v%d, v13" % (MW + w, MW + w))
    for w in range(W):
        e("v_mul_f32 v%d, s%d, v%d" % (MW + w, sC, MW + w))
    for w in range(W):
        e("v_exp_f32 v%d, v%d" % (MW + w, MW + w))
    e("s_nop 0")
    e("v_mul_f32 v14, v%d, v%d" % (MW, LW))
    for w in range(1, W):
        e("v_fmac_f32 v14, v%d, v%d" % (MW + w, LW + w))
    for i in range(4):
        e("v_mul_f32 v%d, v%d, v%d" % (16 + i, MW, PART + i))
    for w in range(1, W):
        for i in range(4):
            e("v_fmac_f32 v%d, v%d, v%d" % (16 + i, MW + w, PART + 4 * w + i))
    e("v_rcp_f32 v15, v14")
    e("s_nop 0")
    for i in range(4):
        e("v_mul_f32 v%d, v%d, v15" % (16 + i, 16 + i))
    e("v_cvt_pk_bf16_f32 v20, v16, v17")
    e("v_cvt_pk_bf16_f32 v21, v18, v19")
    e("buffer_store_dwordx2 v[20:21], v10, s[24:27], s38 offen")
    lab("L_done")
    e("s_endpgm")

    out = HEADER
    out += "; Generated by gen/gen1.py (W=%d flags=%s)\n" % (W, flags)
    out += "; @launch grid=(256,1,1) block=(%d,1,1) lds=%d\n" % (W * 64, LDS)
    out += '.amdgcn_target "amdgcn-amd-amdhsa--gfx950"\n.text\n.globl %s_kernel\n.p2align 8\n.type %s_kernel,@function\n%s_kernel:\n' % (NAME, NAME, NAME)
    out += "\n".join(L) + "\n"
    out += """.section .rodata,"a"
.p2align 6
.amdhsa_kernel %s_kernel
  .amdhsa_next_free_vgpr %d
  .amdhsa_next_free_sgpr 48
  .amdhsa_accum_offset %d
  .amdhsa_group_segment_fixed_size 0
  .amdhsa_kernarg_size 48
  .amdhsa_user_sgpr_count 2
  .amdhsa_user_sgpr_kernarg_segment_ptr 1
  .amdhsa_system_sgpr_workgroup_id_x 1
.end_amdhsa_kernel
""" % (NAME, NV, NV)
    return out

if __name__ == "__main__":
    path = sys.argv[1]
    kw = {}
    for a in sys.argv[2:]:
        k, v = a.split("=")
        kw[k] = int(v) if v.isdigit() else v
    open(path, "w").write(gen(**kw))
```

```python
import sys, math, struct

NAME = "standalone__mha_softmax__sampling"
HEADER = open("cdna_kernels/%s.s.ref" % NAME).read().split("; Override launch")[0]

def f32bits(x):
    return struct.unpack("<I", struct.pack("<f", x))[0]

def gen(W=8, flags="nt", kflags=None, vflags=None, stamp=0):
    kflags = flags if kflags is None else kflags
    vflags = flags if vflags is None else vflags
    L = []
    def e(s): L.append("    " + s)
    def lab(s): L.append(s + ":")
    def c(s): L.append("    ; " + s)
    KEYS = 2048 // W
    NT = KEYS // 64
    WB = KEYS * 384
    LDS_ML = W * 3072
    LDS = LDS_ML + 2 * 4 * W * 4
    vKo, vVo, vM0, vM1, vM, vL, vT0 = 1, 2, 3, 4, 5, 6, 7
    QB = 8
    T = 24
    EE, OO = 32, 36
    PF, AH0, AH1 = 40, 44, 48
    F = 52
    TMP = 56
    FR = 64
    ACC = 96
    RING = 144
    NV = 240
    sWave, sKo, sV0, sCnt, sC, sSelLo, sSelHi = 28, 29, 30, 34, 35, 36, 37
    def vr(b, n): return "v[%d:%d]" % (b, b + n - 1)
    def slot(i): return RING + 4 * i

    c("uniform exit for extra workgroups")
    e("s_cmp_ge_u32 s2, 256")
    e("s_cbranch_scc1 L_done")
    e("s_load_dwordx8 s[4:11], s[0:1], 0        ; q, k, v, out")
    if stamp:
        e("s_memrealtime s[42:43]")
        e("s_load_dwordx2 s[44:45], s[0:1], 32")
    c("lane decomposition")
    e("v_lshrrev_b32 v56, 6, v0")
    e("v_and_b32 v0, 63, v0                     ; lane")
    e("v_readfirstlane_b32 s%d, v56" % sWave)
    c("K lane offset: m*768 + g*64 + v*16, m=(l>>2)&3, v=l&3, g=l>>4")
    e("v_bfe_u32 v57, v0, 2, 2")
    e("v_mul_u32_u24 v57, 768, v57")
    e("v_lshrrev_b32 v58, 4, v0")
    e("v_lshlrev_b32 v58, 6, v58")
    e("v_and_b32 v59, 3, v0")
    e("v_lshlrev_b32 v60, 4, v59")
    e("v_add3_u32 v%d, v57, v58, v60" % vKo)
    c("V lane offset: (l>>3)*384 + (l&7)*16")
    e("v_lshrrev_b32 v57, 3, v0")
    e("v_mul_u32_u24 v57, 384, v57")
    e("v_and_b32 v58, 7, v0")
    e("v_lshlrev_b32 v58, 4, v58")
    e("v_add_u32 v%d, v57, v58" % vVo)
    c("Q lane offset: (l&3)*384 + (l>>2)*16")
    e("v_mul_u32_u24 v59, 384, v59")
    e("v_lshrrev_b32 v58, 2, v0")
    e("v_lshlrev_b32 v58, 4, v58")
    e("v_add_u32 v61, v59, v58")
    c("masks on lane bit 2")
    e("v_bfe_i32 v%d, v0, 2, 1                   ; -1 where bit2 set" % vM1)
    e("v_not_b32 v%d, v%d" % (vM0, vM1))
    e("v_mov_b32 v%d, 0xff800000                 ; m = -inf" % vM)
    e("v_mov_b32 v%d, 0" % vL)
    for i in range(8):
        e("v_mov_b32 v%d, 0" % (QB + 4 + i))
    e("s_mov_b32 s%d, 0x%08x" % (sC, f32bits(192 ** -0.5 * math.log2(math.e))))
    e("s_mov_b32 s%d, 0x05040100" % sSelLo)
    e("s_mov_b32 s%d, 0x07060302" % sSelHi)
    e("s_mul_i32 s38, s2, 786432")
    e("s_mul_i32 s39, s%d, %d" % (sWave, WB))
    e("s_add_u32 s38, s38, s39")
    e("s_mul_i32 s40, s2, 1536")
    e("s_waitcnt lgkmcnt(0)")
    c("SRDs")
    e("s_add_u32 s12, s4, s40")
    e("s_addc_u32 s13, s5, 0")
    e("s_mov_b32 s14, 1536")
    e("s_mov_b32 s15, 0x20000")
    e("s_add_u32 s16, s6, s38")
    e("s_addc_u32 s17, s7, 0")
    e("s_mov_b32 s18, %d" % WB)
    e("s_mov_b32 s19, 0x20000")
    e("s_add_u32 s20, s8, s38")
    e("s_addc_u32 s21, s9, 0")
    e("s_mov_b32 s22, %d" % WB)
    e("s_mov_b32 s23, 0x20000")
    e("s_add_u32 s24, s10, s40")
    e("s_addc_u32 s25, s11, 0")
    e("s_mov_b32 s26, 1536")
    e("s_mov_b32 s27, 0x20000")
    c("Q operand loads")
    e("buffer_load_dwordx4 %s, v61, s[12:15], 0 offen" % vr(QB, 4))
    e("buffer_load_dwordx4 %s, v61, s[12:15], 0 offen offset:128" % vr(QB + 12, 4))
    e("s_mov_b32 exec_hi, 0")
    e("buffer_load_dwordx4 %s, v61, s[12:15], 0 offen offset:256" % vr(QB + 4, 4))
    e("s_mov_b32 exec_hi, -1")
    e("v_subrev_u32 v62, 128, v61")
    e("s_mov_b32 exec_lo, 0")
    e("buffer_load_dwordx4 %s, v62, s[12:15], 0 offen" % vr(QB + 8, 4))
    e("s_mov_b32 exec_lo, -1")
    c("first K tile")
    e("s_mov_b32 s%d, 0" % sKo)
    def kload(i):
        j, s = divmod(i, 3)
        e("buffer_load_dwordx4 %s, v%d, s[16:19], s%d offen offset:%d %s" % (vr(slot(i), 4), vKo, sKo, s * 256, kflags))
        if s == 2:
            e("s_add_u32 s%d, s%d, 3072" % (sKo, sKo))
    def vload(i):
        s, u = divmod(i, 8)
        e("buffer_load_dwordx4 %s, v%d, s[20:23], s%d offen offset:%d %s" % (vr(slot(i), 4), vVo, sV0 + (u >> 1), (u & 1) * 3072 + s * 128, vflags))
    for i in range(24):
        kload(i)
    for i in range(4):
        e("s_mov_b32 s%d, %d" % (sV0 + i, i * 6144))
    for i in range(48):
        e("v_mov_b32 v%d, 0" % (ACC + i))
    e("s_mov_b32 s%d, %d" % (sCnt, NT))

    lab("L_loop")
    c("---- K part: S = K Q^T ----")
    for j in range(8):
        e("s_waitcnt vmcnt(21)")
        e("v_mfma_f32_16x16x32_bf16 %s, %s, %s, 0" % (vr(EE, 4), vr(slot(3 * j), 4), vr(QB, 4)))
        e("v_mfma_f32_16x16x32_bf16 %s, %s, %s, %s" % (vr(EE, 4), vr(slot(3 * j + 1), 4), vr(QB + 4, 4), vr(EE, 4)))
        e("v_mfma_f32_16x16x32_bf16 %s, %s, %s, 0" % (vr(OO, 4), vr(slot(3 * j + 1), 4), vr(QB + 8, 4)))
        e("v_mfma_f32_16x16x32_bf16 %s, %s, %s, %s" % (vr(OO, 4), vr(slot(3 * j + 2), 4), vr(QB + 12, 4), vr(OO, 4)))
        for i in range(3 * j, 3 * j + 3):
            vload(i)
        e("s_nop 5")
        t = T + j
        e("v_add_f32_dpp v%d, v%d, v%d row_shl:4 row_mask:0xf bank_mask:0x1" % (t, EE + 1, EE))
        e("s_nop 1")
        e("v_add_f32_dpp v%d, v%d, v%d row_shl:8 row_mask:0xf bank_mask:0x1" % (t, EE + 2, t))
        e("s_nop 1")
        e("v_add_f32_dpp v%d, v%d, v%d row_shl:12 row_mask:0xf bank_mask:0x1" % (t, EE + 3, t))
        e("s_nop 1")
        e("v_add_f32_dpp v%d, v%d, v%d row_shr:8 row_mask:0xf bank_mask:0x4" % (t, OO, OO + 2))
        e("s_nop 1")
        e("v_add_f32_dpp v%d, v%d, v%d row_shr:4 row_mask:0xf bank_mask:0x4" % (t, OO + 1, t))
        e("s_nop 1")
        e("v_add_f32_dpp v%d, v%d, v%d row_shl:4 row_mask:0xf bank_mask:0x4" % (t, OO + 3, t))
        e("s_nop 1")
        e("v_mov_b32_dpp v%d, v%d row_shr:4 row_mask:0xf bank_mask:0xa" % (t, t))
    for i in range(4):
        e("s_add_u32 s%d, s%d, 24576" % (sV0 + i, sV0 + i))
    c("---- online softmax ----")
    x, y = TMP, TMP + 1
    e("v_max3_f32 v%d, v%d, v%d, v%d" % (x, T, T + 1, T + 2))
    e("v_max3_f32 v%d, v%d, v%d, v%d" % (y, T + 3, T + 4, T + 5))
    e("v_max3_f32 v%d, v%d, v%d, v%d" % (x, x, T + 6, T + 7))
    e("v_max3_f32 v%d, v%d, v%d, v%d" % (x, x, y, vM))
    e("s_nop 1")
    e("v_max_f32_dpp v%d, v%d, v%d row_ror:8 row_mask:0xf bank_mask:0xf" % (x, x, x))
    e("v_mov_b32 v%d, v%d" % (y, x))
    e("s_nop 1")
    e("v_permlane16_swap_b32 v%d, v%d" % (x, y))
    e("s_nop 1")
    e("v_max_f32 v%d, v%d, v%d" % (x, x, y))
    e("v_mov_b32 v%d, v%d" % (y, x))
    e("s_nop 1")
    e("v_permlane32_swap_b32 v%d, v%d" % (x, y))
    e("s_nop 1")
    e("v_max_f32 v%d, v%d, v%d                  ; new max (wave-wide, per q = lane&3)" % (x, x, y))
    e("v_sub_f32 v%d, v%d, v%d" % (y, vM, x))
    e("v_mul_f32 v%d, s%d, v%d" % (y, sC, y))
    e("v_exp_f32 v%d, v%d                       ; f = exp2((m_old-m_new)*c)" % (y, y))
    e("v_mov_b32 v%d, v%d" % (vM, x))
    e("v_mul_f32 v%d, s%d, v%d                  ; m*c" % (x, sC, x))
    for u in range(8):
        e("v_fma_f32 v%d, v%d, s%d, -v%d" % (T + u, T + u, sC, x))
    for u in range(8):
        e("v_exp_f32 v%d, v%d" % (T + u, T + u))
    e("v_mul_f32 v%d, v%d, v%d" % (vL, vL, y))
    for q in range(4):
        e("v_mov_b32_dpp v%d, v%d quad_perm:[%d,%d,%d,%d] row_mask:0xf bank_mask:0xf" % (F + q, y, q, q, q, q))
    for p in range(4):
        e("v_cvt_pk_bf16_f32 v%d, v%d, v%d" % (PF + p, T + 2 * p, T + 2 * p + 1))
    z = TMP + 2
    e("v_add_f32 v%d, v%d, v%d" % (z, T, T + 1))
    e("v_add_f32 v%d, v%d, v%d" % (z + 1, T + 2, T + 3))
    e("v_add_f32 v%d, v%d, v%d" % (z + 2, T + 4, T + 5))
    e("v_add_f32 v%d, v%d, v%d" % (z + 3, T + 6, T + 7))
    e("v_add_f32 v%d, v%d, v%d" % (z, z, z + 1))
    e("v_add_f32 v%d, v%d, v%d" % (z + 2, z + 2, z + 3))
    e("v_add_f32 v%d, v%d, v%d" % (z, z, z + 2))
    e("v_add_f32 v%d, v%d, v%d" % (vL, vL, z))
    for p in range(4):
        e("v_and_b32 v%d, v%d, v%d" % (AH0 + p, PF + p, vM0))
        e("v_and_b32 v%d, v%d, v%d" % (AH1 + p, PF + p, vM1))
    for i in range(48):
        e("v_mul_f32 v%d, v%d, v%d" % (ACC + i, ACC + i, F + (i & 3)))
    c("---- V part: O += P V ----")
    for s in range(3):
        e("s_waitcnt vmcnt(16)")
        for ee in range(8):
            tt, half = ee >> 1, ee & 1
            for p in range(4):
                e("v_perm_b32 v%d, v%d, v%d, s%d" % (FR + 4 * ee + p, slot(8 * s + 2 * p + 1) + tt, slot(8 * s + 2 * p) + tt, sSelHi if half else sSelLo))
        for i in range(8 * s, 8 * s + 8):
            kload(i)
        for ee in range(8):
            a = ACC + 16 * s + 4 * (ee & 3)
            e("v_mfma_f32_16x16x32_bf16 %s, %s, %s, %s" % (vr(a, 4), vr(AH1 if ee >> 2 else AH0, 4), vr(FR + 4 * ee, 4), vr(a, 4)))
    e("s_sub_u32 s%d, s%d, 1" % (sCnt, sCnt))
    e("s_cmp_lg_u32 s%d, 0" % sCnt)
    e("s_cbranch_scc1 L_loop")

    c("---- epilogue: in-wave reduce ----")
    c("lsum over lane bits 3,4,5")
    e("v_add_f32_dpp v%d, v%d, v%d row_ror:8 row_mask:0xf bank_mask:0xf" % (vL, vL, vL))
    e("v_mov_b32 v%d, v%d" % (y, vL))
    e("s_nop 1")
    e("v_permlane16_swap_b32 v%d, v%d" % (vL, y))
    e("s_nop 1")
    e("v_add_f32 v%d, v%d, v%d" % (vL, vL, y))
    e("v_mov_b32 v%d, v%d" % (y, vL))
    e("s_nop 1")
    e("v_permlane32_swap_b32 v%d, v%d" % (vL, y))
    e("s_nop 1")
    e("v_add_f32 v%d, v%d, v%d" % (vL, vL, y))
    c("address for m/l: LDS_ML + ((l&3)*W + wave)*4")
    e("v_and_b32 v%d, 3, v0" % z)
    e("v_lshlrev_b32 v%d, %d, v%d" % (z, int(math.log2(W)) + 2, z))
    e("s_lshl_b32 s38, s%d, 2" % sWave)
    e("v_add_u32 v%d, s38, v%d" % (z, z))
    e("ds_write_b32 v%d, v%d offset:%d" % (z, vM, LDS_ML))
    e("ds_write_b32 v%d, v%d offset:%d" % (z, vL, LDS_ML + 16 * W))
    e("s_nop 4")
    for g in range(12):
        a = ACC + 4 * g
        e("v_permlane32_swap_b32 v%d, v%d" % (a, a + 1))
        e("v_permlane32_swap_b32 v%d, v%d" % (a + 2, a + 3))
    e("s_nop 1")
    for g in range(12):
        a = ACC + 4 * g
        e("v_add_f32_dpp v%d, v%d, v%d row_ror:8 row_mask:0xf bank_mask:0x3" % (FR + g, a + 1, a))
    for g in range(12):
        a = ACC + 4 * g
        e("v_add_f32_dpp v%d, v%d, v%d row_ror:8 row_mask:0xf bank_mask:0xc" % (FR + g, a + 2, a + 3))
    e("s_mul_i32 s38, s%d, 3072" % sWave)
    e("v_lshlrev_b32 v%d, 4, v0" % (z + 1))
    e("v_add_u32 v%d, s38, v%d" % (z + 2, z + 1))
    for s in range(3):
        e("ds_write_b128 v%d, %s offset:%d" % (z + 2, vr(FR + 4 * s, 4), s * 1024))
    e("s_waitcnt lgkmcnt(0)")
    e("s_barrier")
    e("s_cmp_ge_u32 s%d, 3" % sWave)
    e("s_cbranch_scc1 L_done")
    c("---- final combine: wave s (0..2), lane: q = 2*bit3 + bit5, h = bit4, c = l&7 ----")
    e("s_lshl_b32 s38, s%d, 10" % sWave)
    e("v_add_u32 v%d, s38, v%d                  ; s*1024 + l*16" % (z + 2, z + 1))
    PART = ACC
    for w in range(W):
        e("ds_read_b128 %s, v%d offset:%d" % (vr(PART + 4 * w, 4), z + 2, w * 3072))
    e("v_bfe_u32 v8, v0, 3, 1")
    e("v_lshlrev_b32 v8, 1, v8")
    e("v_lshrrev_b32 v9, 5, v0")
    e("v_add_u32 v8, v8, v9                     ; q")
    e("v_lshlrev_b32 v9, %d, v8" % (int(math.log2(W)) + 2))
    MW, LW = FR, FR + 16
    for i in range(W // 4):
        e("ds_read_b128 %s, v9 offset:%d" % (vr(MW + 4 * i, 4), LDS_ML + 16 * i))
    for i in range(W // 4):
        e("ds_read_b128 %s, v9 offset:%d" % (vr(LW + 4 * i, 4), LDS_ML + 16 * W + 16 * i))
    c("output offset = q*384 + (8s+c)*16 + h*8")
    e("v_mul_u32_u24 v10, 384, v8")
    e("v_and_b32 v11, 7, v0")
    e("v_lshlrev_b32 v11, 4, v11")
    e("v_bfe_u32 v12, v0, 4, 1")
    e("v_lshlrev_b32 v12, 3, v12")
    e("v_add3_u32 v10, v10, v11, v12")
    e("s_lshl_b32 s38, s%d, 7" % sWave)
    e("s_waitcnt lgkmcnt(0)")
    e("v_max_f32 v13, v%d, v%d" % (MW, MW + 1))
    for w in range(2, W, 2):
        e("v_max3_f32 v13, v13, v%d, v%d" % (MW + w, MW + w + 1))
    for w in range(W):
        e("v_sub_f32 v%d, v%d, v13" % (MW + w, MW + w))
    for w in range(W):
        e("v_mul_f32 v%d, s%d, v%d" % (MW + w, sC, MW + w))
    for w in range(W):
        e("v_exp_f32 v%d, v%d" % (MW + w, MW + w))
    e("s_nop 0")
    e("v_mul_f32 v14, v%d, v%d" % (MW, LW))
    for w in range(1, W):
        e("v_fmac_f32 v14, v%d, v%d" % (MW + w, LW + w))
    for i in range(4):
        e("v_mul_f32 v%d, v%d, v%d" % (16 + i, MW, PART + i))
    for w in range(1, W):
        for i in range(4):
            e("v_fmac_f32 v%d, v%d, v%d" % (16 + i, MW + w, PART + 4 * w + i))
    e("v_rcp_f32 v15, v14")
    e("s_nop 0")
    for i in range(4):
        e("v_mul_f32 v%d, v%d, v15" % (16 + i, 16 + i))
    e("v_cvt_pk_bf16_f32 v20, v16, v17")
    e("v_cvt_pk_bf16_f32 v21, v18, v19")
    e("buffer_store_dwordx2 v[20:21], v10, s[24:27], s38 offen")
    if stamp:
        e("s_waitcnt vmcnt(0)")
        e("s_memrealtime s[40:41]")
        e("s_waitcnt lgkmcnt(0)")
        e("s_sub_u32 s40, s40, s42")
        e("s_and_b32 s41, s2, 15")
        e("s_cmp_lg_u32 s41, %d" % (stamp - 1))
        e("s_cbranch_scc1 L_done")
        e("s_cmp_lg_u32 s%d, 0" % sWave)
        e("s_cbranch_scc1 L_done")
        e("s_lshr_b32 s41, s2, 4")
        e("s_lshl_b32 s41, s41, 2")
        e("v_mov_b32 v3, s41")
        e("v_mov_b32 v2, s40")
        e("s_mov_b64 exec, 1")
        e("global_store_dword v3, v2, s[44:45]")
    lab("L_done")
    e("s_endpgm")

    out = HEADER
    out += "; Generated by gen/gen1.py (W=%d kflags=%s vflags=%s)\n" % (W, kflags, vflags)
    out += "; @launch grid=(256,1,1) block=(%d,1,1) lds=%d\n" % (W * 64, LDS)
    out += '.amdgcn_target "amdgcn-amd-amdhsa--gfx950"\n.text\n.globl %s_kernel\n.p2align 8\n.type %s_kernel,@function\n%s_kernel:\n' % (NAME, NAME, NAME)
    out += "\n".join(L) + "\n"
    out += """.section .rodata,"a"
.p2align 6
.amdhsa_kernel %s_kernel
  .amdhsa_next_free_vgpr %d
  .amdhsa_next_free_sgpr 48
  .amdhsa_accum_offset %d
  .amdhsa_group_segment_fixed_size 0
  .amdhsa_kernarg_size 48
  .amdhsa_user_sgpr_count 2
  .amdhsa_user_sgpr_kernarg_segment_ptr 1
  .amdhsa_system_sgpr_workgroup_id_x 1
.end_amdhsa_kernel
""" % (NAME, NV, NV)
    return out

if __name__ == "__main__":
    path = sys.argv[1]
    kw = {}
    for a in sys.argv[2:]:
        k, v = a.split("=")
        kw[k] = int(v) if v.isdigit() else v
    open(path, "w").write(gen(**kw))
```

```python
import sys, math, struct

NAME = "standalone__mha_softmax__sampling"
HEADER = open("cdna_kernels/%s.s.ref" % NAME).read().split("; Override launch")[0]

def f32bits(x):
    return struct.unpack("<I", struct.pack("<f", x))[0]

def gen(R="6", rot=56, flags="nt", stamp=0, ldsmin=0, burst=1, RB=19, R0=0):
    W = 4
    Rs = [int(x) for x in str(R).split("x")]
    RM = max(Rs)
    assert RM <= 9 and 24 % len(Rs) == 0
    L = []
    def e(s): L.append("    " + s)
    def lab(s): L.append(s + ":")
    def c(s): L.append("    ; " + s)
    HB = 786432
    LDS_ML = 65536
    LDS = max(LDS_ML + 2 * 4 * W * 4, ldsmin)
    vKo, vVo, vM0, vM1, vM, vL, vSW, vSR = 1, 2, 3, 4, 5, 6, 7, 62
    QB = 8
    T = 24
    EE, OO = 32, 36
    PF, AH0, AH1 = 40, 42, 44
    MC = 46
    FF = 47
    TMP = 48
    FR = 64
    ACC = 80
    RING = 128
    NV = 224
    BH0, BH1 = 32, 34
    RR = 36
    sWave, sKo, sVo, sCnt, sC, sSelLo, sSelHi = 28, 29, 30, 34, 35, 36, 37
    sU = 42
    ST = 48
    nst = [0]
    def stampit():
        if not stamp: return
        i = nst[0]; nst[0] += 1
        e("s_memrealtime s[%d:%d]" % (ST + 2 * i, ST + 2 * i + 1))
    def vr(b, n): return "v[%d:%d]" % (b, b + n - 1)
    def slot(i): return RING + 4 * (i % 24)
    USTEP, WOFF, SPAN = 12288, 3072, HB

    def adv(sreg, dst=None):
        dst = sreg if dst is None else dst
        e("s_add_u32 s%d, s%d, %d" % (dst, sreg, USTEP))
        e("s_cmp_eq_u32 s%d, %d" % (dst, SPAN))
        e("s_cselect_b32 s%d, 0, s%d" % (dst, dst))
    def kstep(n, wait=True):
        s = n % 3
        if wait: e("s_waitcnt vmcnt(%d)" % (Rs[n % len(Rs)] - 1))
        e("buffer_load_dwordx4 %s, v%d, s[16:19], s%d offen offset:%d %s" % (vr(slot(n), 4), vKo, sKo, s * 256, flags))
        if s == 2: adv(sKo)
    def vstep(m, wait=None):
        s = m % 3
        e("s_waitcnt vmcnt(%d)" % ((Rs[m % len(Rs)] if wait is None else wait) - 1))
        e("buffer_load_dwordx4 %s, v%d, s[20:23], s%d offen offset:%d %s" % (vr(slot(m), 4), vVo, sVo, s * 128, flags))
        if s == 2: adv(sVo)

    def kcompute(o):
        x = o - (2 + RM)
        j, ph = (x // 3) % 8, x % 3
        t = T + j
        if ph == 0:
            e("v_mfma_f32_16x16x32_bf16 %s, %s, %s, 0" % (vr(EE, 4), vr(slot(3 * j), 4), vr(QB, 4)))
            e("v_mfma_f32_16x16x32_bf16 %s, %s, %s, %s" % (vr(EE, 4), vr(slot(3 * j + 1), 4), vr(QB + 4, 4), vr(EE, 4)))
            e("v_mfma_f32_16x16x32_bf16 %s, %s, %s, 0" % (vr(OO, 4), vr(slot(3 * j + 1), 4), vr(QB + 8, 4)))
            e("v_mfma_f32_16x16x32_bf16 %s, %s, %s, %s" % (vr(OO, 4), vr(slot(3 * j + 2), 4), vr(QB + 12, 4), vr(OO, 4)))
        elif ph == 1:
            e("s_nop 3")
            e("v_add_f32_dpp v%d, v%d, v%d row_shl:4 row_mask:0xf bank_mask:0x1" % (t, EE + 1, EE))
            e("s_nop 1")
            e("v_add_f32_dpp v%d, v%d, v%d row_shl:8 row_mask:0xf bank_mask:0x1" % (t, EE + 2, t))
            e("s_nop 1")
            e("v_add_f32_dpp v%d, v%d, v%d row_shl:12 row_mask:0xf bank_mask:0x1" % (t, EE + 3, t))
        else:
            e("v_add_f32_dpp v%d, v%d, v%d row_shr:8 row_mask:0xf bank_mask:0x4" % (t, OO, OO + 2))
            e("s_nop 1")
            e("v_add_f32_dpp v%d, v%d, v%d row_shr:4 row_mask:0xf bank_mask:0x4" % (t, OO + 1, t))
            e("s_nop 1")
            e("v_add_f32_dpp v%d, v%d, v%d row_shl:4 row_mask:0xf bank_mask:0x4" % (t, OO + 3, t))
            e("s_nop 1")
            e("v_mov_b32_dpp v%d, v%d row_shr:4 row_mask:0xf bank_mask:0xa" % (t, t))
            if j % 4 == 3:
                b = T + j - 3
                e("ds_write_b128 v%d, %s" % (vSW, vr(b, 4)))
                e("v_add_u32 v%d, 1024, v%d" % (vSW, vSW))
                e("v_max3_f32 v%d, v%d, v%d, v%d" % (vM, vM, b, b + 1))
                e("v_max3_f32 v%d, v%d, v%d, v%d" % (vM, vM, b + 2, b + 3))
    x, y, z = TMP, TMP + 1, TMP + 2
    def prep_exp(t):
        for u in range(4):
            e("v_fma_f32 v%d, v%d, s%d, -v%d" % (t + u, t + u, sC, MC))
        for u in range(4):
            e("v_exp_f32 v%d, v%d" % (t + u, t + u))
    def prep_pack(t):
        e("v_cvt_pk_bf16_f32 v%d, v%d, v%d" % (PF, t, t + 1))
        e("v_cvt_pk_bf16_f32 v%d, v%d, v%d" % (PF + 1, t + 2, t + 3))
        e("v_add_f32 v%d, v%d, v%d" % (x, t, t + 1))
        e("v_add_f32 v%d, v%d, v%d" % (y, t + 2, t + 3))
        e("v_add_f32 v%d, v%d, v%d" % (x, x, y))
        e("v_add_f32 v%d, v%d, v%d" % (vL, vL, x))
    def prep_mask(h0, h1):
        for p in range(2):
            e("v_and_b32 v%d, v%d, v%d" % (h0 + p, PF + p, vM0))
            e("v_and_b32 v%d, v%d, v%d" % (h1 + p, PF + p, vM1))
    def pv_perm(base, s, hh):
        fr = FR + 8 * hh
        for i in range(4):
            ee = 4 * hh + i
            tt, hi = ee >> 1, ee & 1
            for p in range(2):
                e("v_perm_b32 v%d, v%d, v%d, s%d" % (fr + 2 * i + p, slot(base + 3 * (2 * p + 1) + s) + tt, slot(base + 3 * (2 * p) + s) + tt, sSelHi if hi else sSelLo))
    def pv_mfma(s, hh, h0, h1):
        fr = FR + 8 * hh
        for i in range(4):
            a = ACC + 16 * s + 4 * i
            e("v_mfma_f32_16x16x16_bf16 %s, %s, %s, %s" % (vr(a, 4), vr(h1 if hh else h0, 2), vr(fr + 2 * i, 2), vr(a, 4)))

    c("uniform exit for extra workgroups")
    e("s_cmp_ge_u32 s2, 256")
    e("s_cbranch_scc1 L_done")
    e("s_load_dwordx8 s[4:11], s[0:1], 0        ; q, k, v, out")
    stampit()
    if stamp: e("s_memtime s[76:77]")
    c("lane decomposition")
    e("v_lshrrev_b32 v56, 6, v0")
    e("v_and_b32 v0, 63, v0                     ; lane")
    e("v_readfirstlane_b32 s%d, v56" % sWave)
    e("v_mul_u32_u24 v56, %d, v56               ; wave byte offset" % WOFF)
    c("K lane offset: m*768 + g*64 + v*16, m=(l>>2)&3, v=l&3, g=l>>4")
    e("v_bfe_u32 v57, v0, 2, 2")
    e("v_mul_u32_u24 v57, 768, v57")
    e("v_lshrrev_b32 v58, 4, v0")
    e("v_lshlrev_b32 v58, 6, v58")
    e("v_and_b32 v59, 3, v0")
    e("v_lshlrev_b32 v60, 4, v59")
    e("v_add3_u32 v%d, v57, v58, v60" % vKo)
    e("v_add_u32 v%d, v%d, v56" % (vKo, vKo))
    c("Q lane offsets: (l&3)*384 + (l>>2)*16 ; middle operand: lanes<32 +256, lanes>=32 -128")
    e("v_mul_u32_u24 v59, 384, v59")
    e("v_lshrrev_b32 v58, 2, v0")
    e("v_lshlrev_b32 v58, 4, v58")
    e("v_add_u32 v61, v59, v58")
    e("v_lshrrev_b32 v58, 5, v0")
    e("v_mul_u32_u24 v58, 384, v58")
    e("v_sub_u32 v55, v61, v58")
    e("s_mul_i32 s38, s2, %d                ; head byte offset (K,V), < 2^28" % HB)
    e("s_mul_i32 s40, s2, 1536")
    e("s_mov_b32 s14, 1536")
    e("s_mov_b32 s15, 0x20000")
    e("s_mov_b32 s18, %d" % HB)
    e("s_mov_b32 s19, 0x20000")
    c("rotated start unit")
    e("s_mul_i32 s39, s2, %d" % rot)
    e("s_and_b32 s39, s39, 63")
    e("s_mul_i32 s%d, s39, %d" % (sKo, USTEP))
    e("s_mov_b32 s%d, s%d" % (sVo, sKo))
    e("v_add_u32 v55, 256, v55")
    e("s_waitcnt lgkmcnt(0)")
    stampit()
    e("s_add_u32 s12, s4, s40")
    e("s_addc_u32 s13, s5, 0")
    e("s_add_u32 s16, s6, s38")
    e("s_addc_u32 s17, s7, 0")
    e("buffer_load_dwordx4 %s, v61, s[12:15], 0 offen" % vr(QB, 4))
    kstep(0, wait=False)
    e("buffer_load_dwordx4 %s, v55, s[12:15], 0 offen" % vr(QB + 4, 4))
    kstep(1, wait=False)
    e("buffer_load_dwordx4 %s, v61, s[12:15], 0 offen offset:128" % vr(QB + 12, 4))
    NP = max(RM, R0)
    assert NP <= RM + 2
    for n in range(2, NP):
        kstep(n, wait=False)
    e("s_mov_b32 s22, %d" % HB)
    e("s_mov_b32 s23, 0x20000")
    e("s_mov_b32 s26, 1536")
    e("s_mov_b32 s27, 0x20000")
    e("s_add_u32 s20, s8, s38")
    e("s_addc_u32 s21, s9, 0")
    e("s_add_u32 s24, s10, s40")
    e("s_addc_u32 s25, s11, 0")
    c("V lane offset: (l>>3)*384 + (l&7)*16")
    e("v_lshrrev_b32 v57, 3, v0")
    e("v_mul_u32_u24 v57, 384, v57")
    e("v_and_b32 v58, 7, v0")
    e("v_lshlrev_b32 v58, 4, v58")
    e("v_add3_u32 v%d, v57, v58, v56" % vVo)
    c("masks on lane bit 2")
    e("v_bfe_i32 v%d, v0, 2, 1                   ; -1 where bit2 set" % vM1)
    e("v_not_b32 v%d, v%d" % (vM0, vM1))
    e("v_mov_b32 v%d, 0xff800000                 ; m = -inf" % vM)
    e("v_mov_b32 v%d, 0" % vL)
    c("LDS address of this wave's score area: wave*16384 + lane*16")
    e("s_lshl_b32 s39, s%d, 14" % sWave)
    e("v_lshlrev_b32 v%d, 4, v0" % vSW)
    e("v_add_u32 v%d, s39, v%d" % (vSW, vSW))
    e("v_mov_b32 v%d, v%d" % (vSR, vSW))
    e("v_mov_b32 v63, v%d" % vSW)
    e("s_mov_b32 s%d, 0x%08x" % (sC, f32bits(192 ** -0.5 * math.log2(math.e))))
    e("s_mov_b32 s%d, 0x05040100" % sSelLo)
    e("s_mov_b32 s%d, 0x07060302" % sSelHi)
    for i in range(48):
        e("v_mov_b32 v%d, 0" % (ACC + i))
    e("v_ashrrev_i32 v57, 5, v0")
    e("v_sub_u32 v57, 0, v57")
    e("v_not_b32 v58, v57")
    e("s_mov_b32 s%d, 8" % sCnt)
    for n in range(NP, RM + 2):
        kstep(n)
    c("split the middle Q operand (its load is older than K load 2..): lanes<32 -> even keys, lanes>=32 -> odd keys")
    e("s_waitcnt vmcnt(%d)" % RM)
    for i in range(4):
        e("v_and_b32 v%d, v%d, v57" % (QB + 8 + i, QB + 4 + i))
    for i in range(4):
        e("v_and_b32 v%d, v%d, v58" % (QB + 4 + i, QB + 4 + i))
    stampit()
    e("s_branch L_kmid")

    lab("L_kloop")
    for o in range(24):
        if o == RM + 2:
            lab("L_kmid")
        kstep(o)
        kcompute(o)
    e("s_sub_u32 s%d, s%d, 1" % (sCnt, sCnt))
    e("s_cmp_lg_u32 s%d, 0" % sCnt)
    e("s_cbranch_scc1 L_kloop")
    stampit()

    c("---- transition: first V loads, K tail, final max ----")
    c0 = RM + 5
    for m in range(c0):
        vstep(m)
        if m <= RM + 1:
            kcompute(m)
        elif m == RM + 2:
            e("v_max_f32_dpp v%d, v%d, v%d row_ror:8 row_mask:0xf bank_mask:0xf" % (vM, vM, vM))
            e("v_mov_b32 v%d, v%d" % (y, vM))
            e("s_nop 1")
            e("v_permlane16_swap_b32 v%d, v%d" % (vM, y))
        elif m == RM + 3:
            e("v_max_f32 v%d, v%d, v%d" % (vM, vM, y))
            e("v_mov_b32 v%d, v%d" % (y, vM))
            e("s_nop 1")
            e("v_permlane32_swap_b32 v%d, v%d" % (vM, y))
        else:
            e("v_max_f32 v%d, v%d, v%d                  ; true max over this wave's keys (per q = lane&3)" % (vM, vM, y))
            e("v_mul_f32 v%d, s%d, v%d                  ; m*c" % (MC, sC, vM))
    e("s_mov_b32 s%d, 7" % sCnt)

    lab("L_vloop")
    for k in range(24):
        vstep(c0 + k)
        half, kk = divmod(k, 12)
        base = 12 * half
        if kk == 0:
            e("ds_read_b128 %s, v%d offset:%d" % (vr(T, 4), vSR, 1024 * half))
            if half == 1:
                e("v_add_u32 v%d, 2048, v%d" % (vSR, vSR))
        elif kk == 1:
            e("s_waitcnt lgkmcnt(0)")
            prep_exp(T)
        elif kk == 2:
            prep_pack(T)
        elif kk == 3:
            prep_mask(AH0, AH1)
        elif kk >= 6:
            s, hh = divmod(kk - 6, 2)
            pv_perm(base, s, hh)
            pv_mfma(s, hh, AH0, AH1)
    e("s_sub_u32 s%d, s%d, 1" % (sCnt, sCnt))
    e("s_cmp_lg_u32 s%d, 0" % sCnt)
    e("s_cbranch_scc1 L_vloop")
    stampit()

    c("---- last two groups (14, 15): issue the remaining loads, group 15 in s-major order ----")
    m0 = 168 + c0
    e("ds_read_b128 %s, v%d" % (vr(T, 4), vSR))
    e("ds_read_b128 %s, v%d offset:1024" % (vr(T + 4, 4), vSR))
    wn = RB if burst else None
    work = []
    def w_exp14(): e("s_waitcnt lgkmcnt(1)"); prep_exp(T)
    def w_pack14(): prep_pack(T); prep_mask(AH0, AH1)
    def w_exp15(): e("s_waitcnt lgkmcnt(0)"); prep_exp(T + 4)
    def w_pack15(): prep_pack(T + 4); prep_mask(BH0, BH1)
    def w_l1():
        e("v_add_f32_dpp v%d, v%d, v%d row_ror:8 row_mask:0xf bank_mask:0xf" % (vL, vL, vL))
        e("v_mov_b32 v%d, v%d" % (y, vL))
        e("s_nop 1")
        e("v_permlane16_swap_b32 v%d, v%d" % (vL, y))
        e("s_nop 1")
        e("v_add_f32 v%d, v%d, v%d" % (vL, vL, y))
    def w_l2():
        e("v_mov_b32 v%d, v%d" % (y, vL))
        e("s_nop 1")
        e("v_permlane32_swap_b32 v%d, v%d" % (vL, y))
        e("s_nop 1")
        e("v_add_f32 v%d, v%d, v%d" % (vL, vL, y))
        c("m/l table: LDS_ML + ((l&3)*4 + wave)*4")
        e("v_and_b32 v%d, 3, v0" % z)
        e("v_lshlrev_b32 v%d, 4, v%d" % (z, z))
        e("s_lshl_b32 s38, s%d, 2" % sWave)
        e("s_add_u32 s38, s38, %d" % LDS_ML)
        e("v_add_u32 v%d, s38, v%d" % (z, z))
        e("ds_write_b32 v%d, v%d" % (z, vM))
        e("ds_write_b32 v%d, v%d offset:64" % (z, vL))
    def w_addr():
        c("output-side lane roles: q = 2*bit3 + bit5, h = bit4, c = l&7")
        e("v_bfe_u32 v8, v0, 3, 1")
        e("v_lshlrev_b32 v8, 1, v8")
        e("v_lshrrev_b32 v9, 5, v0")
        e("v_add_u32 v8, v8, v9                     ; q")
        e("v_lshlrev_b32 v9, 4, v8")
        e("v_add_u32 v11, s38, v9")
        e("v_add_u32 v9, %d, v9                  ; row of the m/l table" % LDS_ML)
        e("v_mul_u32_u24 v10, 384, v8")
        e("v_and_b32 v12, 7, v0")
        e("v_lshlrev_b32 v12, 4, v12")
        e("v_bfe_u32 v13, v0, 4, 1")
        e("v_lshlrev_b32 v13, 3, v13")
        e("v_add3_u32 v10, v10, v12, v13")
        e("s_lshl_b32 s39, s%d, 10" % sWave)
        e("v_lshlrev_b32 v12, 4, v0")
        e("v_add_u32 v12, s39, v12                  ; s*1024 + l*16")
        e("s_lshl_b32 s39, s%d, 7" % sWave)
    work = [w_exp14, w_pack14, w_exp15, w_pack15, w_l1, w_l2, w_addr]
    rem = list(range(m0, 180))
    for m in rem:
        vstep(m, wn)
    done15 = [m - 180 for m in range(180, m0)]
    assert len(done15) <= 2
    e("s_mov_b32 s%d, s%d" % (sU, sVo))
    for u in range(1, 4):
        adv(sU + u - 1, sU + u)
    order = [(s, u) for s in range(3) for u in range(4) if not (u == 0 and s in done15)]
    wi = 0
    for idx, (s, u) in enumerate(order):
        if burst: e("s_waitcnt vmcnt(%d)" % (RB - 1))
        else: e("s_waitcnt vmcnt(%d)" % (Rs[idx % len(Rs)] - 1))
        e("buffer_load_dwordx4 %s, v%d, s[20:23], s%d offen offset:%d %s" % (vr(slot(12 + 3 * u + s), 4), vVo, sU + u, s * 128, flags))
        if not burst and wi < len(work):
            work[wi](); wi += 1
    while wi < len(work):
        work[wi](); wi += 1
    e("s_waitcnt lgkmcnt(0)")
    e("s_barrier")
    MW, LW = 16, 20
    e("ds_read_b128 %s, v9" % vr(MW, 4))
    e("ds_read_b128 %s, v9 offset:64" % vr(LW, 4))
    e("ds_read_b32 v14, v11")
    c("group 14 (all its loads are older than the group-15 loads issued above)")
    n15 = len(order)
    e("s_waitcnt vmcnt(%d)" % n15)
    for s in range(3):
        for hh in range(2):
            pv_perm(0, s, hh)
            pv_mfma(s, hh, AH0, AH1)
    c("scale factor f = exp2((m_own - M)*c) / L")
    e("s_waitcnt lgkmcnt(0)")
    e("v_max_f32 v13, v%d, v%d" % (MW, MW + 1))
    e("v_max3_f32 v13, v13, v%d, v%d" % (MW + 2, MW + 3))
    for w in range(W):
        e("v_sub_f32 v%d, v%d, v13" % (MW + w, MW + w))
    e("v_sub_f32 v14, v14, v13")
    for w in range(W):
        e("v_mul_f32 v%d, s%d, v%d" % (MW + w, sC, MW + w))
    e("v_mul_f32 v14, s%d, v14" % sC)
    for w in range(W):
        e("v_exp_f32 v%d, v%d" % (MW + w, MW + w))
    e("v_exp_f32 v14, v14")
    e("v_mul_f32 v15, v%d, v%d" % (MW, LW))
    for w in range(1, W):
        e("v_fmac_f32 v15, v%d, v%d" % (MW + w, LW + w))
    e("v_rcp_f32 v15, v15")
    e("s_nop 0")
    e("v_mul_f32 v%d, v14, v15" % FF)
    c("group 15, one s at a time, each followed by the in-wave reduction of its accumulators")
    for s in range(3):
        left = len([1 for (s2, u) in order if s2 > s])
        e("s_waitcnt vmcnt(%d)" % left)
        if s == 2: stampit()
        pv_perm(12, s, 0)
        pv_mfma(s, 0, BH0, BH1)
        pv_perm(12, s, 1)
        pv_mfma(s, 1, BH0, BH1)
        e("s_nop 4")
        for i in range(4):
            a = ACC + 16 * s + 4 * i
            if i == 3: e("s_nop 0")
            e("v_permlane32_swap_b32 v%d, v%d" % (a, a + 1))
            e("v_permlane32_swap_b32 v%d, v%d" % (a + 2, a + 3))
        for i in range(4):
            a = ACC + 16 * s + 4 * i
            e("v_add_f32_dpp v%d, v%d, v%d row_ror:8 row_mask:0xf bank_mask:0x3" % (RR + i, a + 1, a))
        for i in range(4):
            a = ACC + 16 * s + 4 * i
            e("v_add_f32_dpp v%d, v%d, v%d row_ror:8 row_mask:0xf bank_mask:0xc" % (RR + i, a + 2, a + 3))
        for i in range(4):
            e("v_mul_f32 v%d, v%d, v%d" % (ACC + 16 * s + i, RR + i, FF))
        e("ds_write_b128 v63, %s offset:%d" % (vr(ACC + 16 * s, 4), s * 1024))
    e("s_waitcnt lgkmcnt(0)")
    stampit()
    e("s_barrier")
    e("s_cmp_ge_u32 s%d, 3" % sWave)
    e("s_cbranch_scc1 L_fin")
    PART = FR
    for w in range(W):
        e("ds_read_b128 %s, v12 offset:%d" % (vr(PART + 4 * w, 4), w * 16384))
    e("s_waitcnt lgkmcnt(2)")
    for i in range(4):
        e("v_add_f32 v%d, v%d, v%d" % (PART + i, PART + i, PART + 4 + i))
    e("s_waitcnt lgkmcnt(0)")
    for i in range(4):
        e("v_add_f32 v%d, v%d, v%d" % (PART + 8 + i, PART + 8 + i, PART + 12 + i))
    for i in range(4):
        e("v_add_f32 v%d, v%d, v%d" % (PART + i, PART + i, PART + 8 + i))
    e("v_cvt_pk_bf16_f32 v20, v%d, v%d" % (PART, PART + 1))
    e("v_cvt_pk_bf16_f32 v21, v%d, v%d" % (PART + 2, PART + 3))
    e("buffer_store_dwordx2 v[20:21], v10, s[24:27], s39 offen")
    lab("L_fin")
    if stamp:
        stampit()
        e("s_waitcnt vmcnt(0)")
        stampit()
        e("s_memtime s[78:79]")
        n = nst[0]
        assert n <= 13
        e("s_load_dwordx2 s[44:45], s[0:1], 40")
        e("s_getreg_b32 s41, hwreg(HW_REG_XCC_ID)")
        e("s_mul_i32 s46, s2, %d" % W)
        e("s_add_u32 s46, s46, s%d" % sWave)
        e("s_lshl_b32 s46, s46, 6")
        e("v_mov_b32 v3, s46")
        e("s_waitcnt lgkmcnt(0)")
        for i in range(16):
            if i < n: e("v_mov_b32 v%d, s%d" % (8 + i, ST + 2 * i))
            elif i == 13:
                e("s_sub_u32 s76, s78, s76")
                e("v_mov_b32 v%d, s76" % (8 + i))
            elif i == 14: e("v_mov_b32 v%d, s41" % (8 + i))
            else: e("v_mov_b32 v%d, %d" % (8 + i, n))
        e("s_mov_b64 exec, 1")
        for i in range(4):
            e("global_store_dwordx4 v3, v[%d:%d], s[44:45] offset:%d" % (8 + 4 * i, 11 + 4 * i, 16 * i))
    lab("L_done")
    e("s_endpgm")

    out = HEADER
    out += "; Generated by gen/gen4.py (R=%s rot=%d flags=%s burst=%d RB=%d R0=%d)\n" % (R, rot, flags, burst, RB, R0)
    out += "; @launch grid=(256,1,1) block=(%d,1,1) lds=%d\n" % (W * 64, LDS)
    out += '.amdgcn_target "amdgcn-amd-amdhsa--gfx950"\n.text\n.globl %s_kernel\n.p2align 8\n.type %s_kernel,@function\n%s_kernel:\n' % (NAME, NAME, NAME)
    out += "\n".join(L) + "\n"
    out += """.section .rodata,"a"
.p2align 6
.amdhsa_kernel %s_kernel
  .amdhsa_next_free_vgpr %d
  .amdhsa_next_free_sgpr %d
  .amdhsa_accum_offset %d
  .amdhsa_group_segment_fixed_size 0
  .amdhsa_kernarg_size 48
  .amdhsa_user_sgpr_count 2
  .amdhsa_user_sgpr_kernarg_segment_ptr 1
  .amdhsa_system_sgpr_workgroup_id_x 1
.end_amdhsa_kernel
""" % (NAME, NV, 84 if stamp else 48, NV)
    return out

if __name__ == "__main__":
    path = sys.argv[1]
    kw = {}
    for a in sys.argv[2:]:
        k, v = a.split("=")
        kw[k] = int(v) if (v.isdigit() and k != "R") else v
    open(path, "w").write(gen(**kw))
```

```python
import re, sys, subprocess
src, dst, idx, K = sys.argv[1], sys.argv[2], int(sys.argv[3]), int(sys.argv[4])
base = open(src).read()
NAME = "standalone__mha_softmax__sampling_kernel"
launch = re.search(r"; @launch grid=\(256,1,1\) block=\((\d+),1,1\) lds=(\d+)\n", base)
real = "; @launch kernel=%s grid=(256,1,1) block=(%s,1,1) lds=%s\n" % (NAME, launch.group(1), launch.group(2))
el = "; @launch kernel=echo_kernel grid=(1,1,1) block=(64,1,1) lds=0\n"
body = ["s_cmp_ge_u32 s2, 1", "s_cbranch_scc1 L_edone", "s_memrealtime s[8:9]", "s_load_dwordx2 s[4:5], s[0:1], 40", "s_waitcnt lgkmcnt(0)",
        "s_load_dword s6, s[4:5], 0", "v_lshlrev_b32 v1, 6, v0", "v_mov_b32 v2, 0x7fffffff", "v_mov_b32 v3, 0x80000000", "s_waitcnt lgkmcnt(0)"]
for i in range(16):
    body += ["global_load_dword v4, v1, s[4:5]", "global_load_dword v5, v1, s[4:5] offset:%d" % (4 * idx), "v_add_u32 v1, 4096, v1", "s_waitcnt vmcnt(0)",
             "v_subrev_u32 v4, s6, v4", "v_subrev_u32 v5, s6, v5", "v_min_i32 v2, v2, v4", "v_max_i32 v3, v3, v5"]
body += ["s_mov_b32 s10, 0x7fffffff", "s_mov_b32 s11, 0x80000000", "s_nop 1"]
for l in range(64):
    body += ["v_readlane_b32 s12, v2, %d" % l, "v_readlane_b32 s13, v3, %d" % l, "s_min_i32 s10, s10, s12", "s_max_i32 s11, s11, s13"]
body += ["s_sub_i32 s11, s11, s10", "s_max_i32 s11, s11, 0", "s_min_i32 s11, s11, 20000", "s_mul_i32 s11, s11, %d" % K, "s_add_u32 s11, s11, 2000",
         "L_espin:", "s_memrealtime s[12:13]", "s_waitcnt lgkmcnt(0)", "s_sub_u32 s12, s12, s8", "s_cmp_lt_u32 s12, s11", "s_cbranch_scc1 L_espin",
         "L_edone:", "s_endpgm"]
echo = ".text\n.globl echo_kernel\n.p2align 8\n.type echo_kernel,@function\necho_kernel:\n" + "\n".join("    " + b for b in body) + """
.section .rodata,"a"
.p2align 6
.amdhsa_kernel echo_kernel
  .amdhsa_next_free_vgpr 8
  .amdhsa_next_free_sgpr 16
  .amdhsa_accum_offset 8
  .amdhsa_group_segment_fixed_size 0
  .amdhsa_kernarg_size 48
  .amdhsa_user_sgpr_count 2
  .amdhsa_user_sgpr_kernarg_segment_ptr 1
  .amdhsa_system_sgpr_workgroup_id_x 1
.end_amdhsa_kernel
"""
open(dst, "w").write(base.replace(launch.group(0), real + el) + echo)
```

```python
import sys, math, struct

NAME = "standalone__mha_softmax__sampling"
HEADER = open("cdna_kernels/%s.s.ref" % NAME).read().split("; Override launch")[0]

def f32bits(x):
    return struct.unpack("<I", struct.pack("<f", x))[0]

def gen(R="6", rot=56, flags="nt", stamp=0, ldsmin=0, burst=1, RB=19, R0=0, hmap=0, touch=0, cpf=0, lateinit=0, vpat=8, qdiag=0, Re=""):
    VS = 128 if vpat == 8 else 256
    W = 4
    Rs = [int(x) for x in str(R).split("x")]
    Res = [int(x) for x in str(Re).split("x")] if Re else Rs
    RM = max(Rs + Res)
    assert RM <= 9 and 24 % len(Rs) == 0 and 24 % len(Res) == 0
    nlab = [0]
    L = []
    def e(s): L.append("    " + s)
    def lab(s): L.append(s + ":")
    def c(s): L.append("    ; " + s)
    HB = 786432
    LDS_ML = 65536
    LDS = max(LDS_ML + 2 * 4 * W * 4, ldsmin)
    vKo, vVo, vM0, vM1, vM, vL, vSW, vSR = 1, 2, 3, 4, 5, 6, 7, 62
    QB = 8
    T = 24
    EE, OO = 32, 36
    PF, AH0, AH1 = 40, 42, 44
    MC = 46
    FF = 47
    TMP = 48
    FR = 64
    ACC = 80
    RING = 128
    NV = 224
    BH0, BH1 = 32, 34
    RR = 36
    sWave, sKo, sVo, sCnt, sC, sSelLo, sSelHi = 28, 29, 30, 34, 35, 36, 37
    sU = 42
    ST = 48
    nst = [0]
    def stampit():
        if not stamp: return
        i = nst[0]; nst[0] += 1
        e("s_memrealtime s[%d:%d]" % (ST + 2 * i, ST + 2 * i + 1))
    def vr(b, n): return "v[%d:%d]" % (b, b + n - 1)
    def slot(i): return RING + 4 * (i % 24)
    USTEP, WOFF, SPAN = 12288, 3072, HB

    def window(n):
        ro, re_ = Rs[n % len(Rs)], Res[n % len(Res)]
        e("s_waitcnt vmcnt(%d)" % (max(ro, re_) - 1))
        if ro != re_:
            nlab[0] += 1
            e("s_cbranch_vcc%s L_w%d" % ("nz" if re_ > ro else "z", nlab[0]))
            e("s_waitcnt vmcnt(%d)" % (min(ro, re_) - 1))
            lab("L_w%d" % nlab[0])
    def adv(sreg, dst=None):
        dst = sreg if dst is None else dst
        e("s_add_u32 s%d, s%d, %d" % (dst, sreg, USTEP))
        e("s_cmp_eq_u32 s%d, %d" % (dst, SPAN))
        e("s_cselect_b32 s%d, 0, s%d" % (dst, dst))
    def kstep(n, wait=True):
        s = n % 3
        if wait: window(n)
        e("buffer_load_dwordx4 %s, v%d, s[16:19], s%d offen offset:%d %s" % (vr(slot(n), 4), vKo, sKo, s * 256, flags))
        if s == 2: adv(sKo)
    def vstep(m, wait=None):
        s = m % 3
        if wait is None: window(m)
        else: e("s_waitcnt vmcnt(%d)" % (wait - 1))
        e("buffer_load_dwordx4 %s, v%d, s[20:23], s%d offen offset:%d %s" % (vr(slot(m), 4), vVo, sVo, s * VS, flags))
        if s == 2: adv(sVo)

    def kcompute(o):
        x = o - (2 + RM)
        j, ph = (x // 3) % 8, x % 3
        t = T + j
        if ph == 0:
            e("v_mfma_f32_16x16x32_bf16 %s, %s, %s, 0" % (vr(EE, 4), vr(slot(3 * j), 4), vr(QB, 4)))
            e("v_mfma_f32_16x16x32_bf16 %s, %s, %s, %s" % (vr(EE, 4), vr(slot(3 * j + 1), 4), vr(QB + 4, 4), vr(EE, 4)))
            e("v_mfma_f32_16x16x32_bf16 %s, %s, %s, 0" % (vr(OO, 4), vr(slot(3 * j + 1), 4), vr(QB + 8, 4)))
            e("v_mfma_f32_16x16x32_bf16 %s, %s, %s, %s" % (vr(OO, 4), vr(slot(3 * j + 2), 4), vr(QB + 12, 4), vr(OO, 4)))
        elif ph == 1:
            e("s_nop 3")
            e("v_add_f32_dpp v%d, v%d, v%d row_shl:4 row_mask:0xf bank_mask:0x1" % (t, EE + 1, EE))
            e("s_nop 1")
            e("v_add_f32_dpp v%d, v%d, v%d row_shl:8 row_mask:0xf bank_mask:0x1" % (t, EE + 2, t))
            e("s_nop 1")
            e("v_add_f32_dpp v%d, v%d, v%d row_shl:12 row_mask:0xf bank_mask:0x1" % (t, EE + 3, t))
        else:
            e("v_add_f32_dpp v%d, v%d, v%d row_shr:8 row_mask:0xf bank_mask:0x4" % (t, OO, OO + 2))
            e("s_nop 1")
            e("v_add_f32_dpp v%d, v%d, v%d row_shr:4 row_mask:0xf bank_mask:0x4" % (t, OO + 1, t))
            e("s_nop 1")
            e("v_add_f32_dpp v%d, v%d, v%d row_shl:4 row_mask:0xf bank_mask:0x4" % (t, OO + 3, t))
            e("s_nop 1")
            e("v_mov_b32_dpp v%d, v%d row_shr:4 row_mask:0xf bank_mask:0xa" % (t, t))
            if j % 4 == 3:
                b = T + j - 3
                e("ds_write_b128 v%d, %s" % (vSW, vr(b, 4)))
                e("v_add_u32 v%d, 1024, v%d" % (vSW, vSW))
                e("v_max3_f32 v%d, v%d, v%d, v%d" % (vM, vM, b, b + 1))
                e("v_max3_f32 v%d, v%d, v%d, v%d" % (vM, vM, b + 2, b + 3))
    x, y, z = TMP, TMP + 1, TMP + 2
    def prep_exp(t):
        for u in range(4):
            e("v_fma_f32 v%d, v%d, s%d, -v%d" % (t + u, t + u, sC, MC))
        for u in range(4):
            e("v_exp_f32 v%d, v%d" % (t + u, t + u))
    def prep_pack(t):
        e("v_cvt_pk_bf16_f32 v%d, v%d, v%d" % (PF, t, t + 1))
        e("v_cvt_pk_bf16_f32 v%d, v%d, v%d" % (PF + 1, t + 2, t + 3))
        e("v_add_f32 v%d, v%d, v%d" % (x, t, t + 1))
        e("v_add_f32 v%d, v%d, v%d" % (y, t + 2, t + 3))
        e("v_add_f32 v%d, v%d, v%d" % (x, x, y))
        e("v_add_f32 v%d, v%d, v%d" % (vL, vL, x))
    def prep_mask(h0, h1):
        for p in range(2):
            e("v_and_b32 v%d, v%d, v%d" % (h0 + p, PF + p, vM0))
            e("v_and_b32 v%d, v%d, v%d" % (h1 + p, PF + p, vM1))
    def pv_perm(base, s, hh):
        fr = FR + 8 * hh
        for i in range(4):
            ee = 4 * hh + i
            tt, hi = ee >> 1, ee & 1
            for p in range(2):
                e("v_perm_b32 v%d, v%d, v%d, s%d" % (fr + 2 * i + p, slot(base + 3 * (2 * p + 1) + s) + tt, slot(base + 3 * (2 * p) + s) + tt, sSelHi if hi else sSelLo))
    def pv_mfma(s, hh, h0, h1):
        fr = FR + 8 * hh
        for i in range(4):
            a = ACC + 16 * s + 4 * i
            e("v_mfma_f32_16x16x16_bf16 %s, %s, %s, %s" % (vr(a, 4), vr(h1 if hh else h0, 2), vr(fr + 2 * i, 2), vr(a, 4)))

    c("uniform exit for extra workgroups")
    e("s_cmp_ge_u32 s2, 256")
    e("s_cbranch_scc1 L_done")
    e("s_load_dwordx8 s[4:11], s[0:1], 0        ; q, k, v, out")
    stampit()
    if stamp: e("s_memtime s[76:77]")
    if hmap:
        c("head = (wg&7)*32 + (wg>>3): the heads of one XCD are contiguous in memory (fewer pages per XCD)")
        e("s_and_b32 s38, s2, 7")
        e("s_lshl_b32 s38, s38, 5")
        e("s_lshr_b32 s39, s2, 3")
        e("s_or_b32 s3, s38, s39")
    else:
        e("s_mov_b32 s3, s2")
    c("lane decomposition")
    e("v_lshrrev_b32 v56, 6, v0")
    e("v_and_b32 v0, 63, v0                     ; lane")
    e("v_readfirstlane_b32 s%d, v56" % sWave)
    e("v_mul_u32_u24 v56, %d, v56               ; wave byte offset" % WOFF)
    c("K lane offset: m*768 + g*64 + v*16, m=(l>>2)&3, v=l&3, g=l>>4")
    e("v_bfe_u32 v57, v0, 2, 2")
    e("v_mul_u32_u24 v57, 768, v57")
    e("v_lshrrev_b32 v58, 4, v0")
    e("v_lshlrev_b32 v58, 6, v58")
    e("v_and_b32 v59, 3, v0")
    e("v_lshlrev_b32 v60, 4, v59")
    e("v_add3_u32 v%d, v57, v58, v60" % vKo)
    e("v_add_u32 v%d, v%d, v56" % (vKo, vKo))
    c("Q lane offsets: (l&3)*384 + (l>>2)*16 ; middle operand: lanes<32 +256, lanes>=32 -128")
    e("v_mul_u32_u24 v59, 384, v59")
    e("v_lshrrev_b32 v58, 2, v0")
    e("v_lshlrev_b32 v58, 4, v58")
    e("v_add_u32 v61, v59, v58")
    e("v_lshrrev_b32 v58, 5, v0")
    e("v_mul_u32_u24 v58, 384, v58")
    e("v_sub_u32 v55, v61, v58")
    e("s_mul_i32 s38, s3, %d                ; head byte offset (K,V), < 2^28" % HB)
    e("s_mul_i32 s40, s3, 1536")
    e("s_mov_b32 s14, 1536")
    e("s_mov_b32 s15, 0x20000")
    e("s_mov_b32 s18, %d" % HB)
    e("s_mov_b32 s19, 0x20000")
    c("rotated start unit")
    e("s_mul_i32 s39, s3, %d" % rot)
    e("s_and_b32 s39, s39, 63")
    e("s_mul_i32 s%d, s39, %d" % (sKo, USTEP))
    e("s_mov_b32 s%d, s%d" % (sVo, sKo))
    e("v_add_u32 v55, 256, v55")
    e("s_waitcnt lgkmcnt(0)")
    stampit()
    e("s_add_u32 s12, s4, s40")
    e("s_addc_u32 s13, s5, 0")
    e("s_add_u32 s16, s6, s38")
    e("s_addc_u32 s17, s7, 0")
    if qdiag == 1:
        kstep(0, wait=False)
        e("s_waitcnt vmcnt(0)")
        stampit()
        e("buffer_load_dwordx4 %s, v61, s[12:15], 0 offen" % vr(QB, 4))
        e("s_waitcnt vmcnt(0)")
        stampit()
        e("buffer_load_dwordx4 %s, v55, s[12:15], 0 offen" % vr(QB + 4, 4))
        kstep(1, wait=False)
        e("s_waitcnt vmcnt(0)")
        stampit()
        e("buffer_load_dwordx4 %s, v61, s[12:15], 0 offen offset:128" % vr(QB + 12, 4))
    elif qdiag == 2:
        e("buffer_load_dwordx4 %s, v61, s[12:15], 0 offen" % vr(QB, 4))
        kstep(0, wait=False)
        e("s_waitcnt vmcnt(1)")
        stampit()
        e("s_waitcnt vmcnt(0)")
        stampit()
        e("buffer_load_dwordx4 %s, v55, s[12:15], 0 offen" % vr(QB + 4, 4))
        kstep(1, wait=False)
        e("s_waitcnt vmcnt(0)")
        stampit()
        e("buffer_load_dwordx4 %s, v61, s[12:15], 0 offen offset:128" % vr(QB + 12, 4))
    else:
        e("buffer_load_dwordx4 %s, v61, s[12:15], 0 offen" % vr(QB, 4))
        kstep(0, wait=False)
        e("buffer_load_dwordx4 %s, v55, s[12:15], 0 offen" % vr(QB + 4, 4))
        kstep(1, wait=False)
        e("buffer_load_dwordx4 %s, v61, s[12:15], 0 offen offset:128" % vr(QB + 12, 4))
    NP = max(RM, R0)
    assert NP <= RM + 2
    for n in range(2, NP):
        kstep(n, wait=False)
    if cpf:
        c("pull the rest of this kernel's code into L2 (one line per lane), wave 3 only")
        e("s_cmp_lg_u32 s%d, 3" % sWave)
        e("s_cbranch_scc1 L_nopf")
        e("s_getpc_b64 s[46:47]")
        lab("L_pf")
        e("v_lshlrev_b32 v57, 7, v0")
        e("v_min_u32 v57, L_done-L_pf, v57")
        e("global_load_dword v59, v57, s[46:47]")
        lab("L_nopf")
    e("s_mov_b32 s22, %d" % HB)
    e("s_mov_b32 s23, 0x20000")
    e("s_mov_b32 s26, 1536")
    e("s_mov_b32 s27, 0x20000")
    e("s_add_u32 s20, s8, s38")
    e("s_addc_u32 s21, s9, 0")
    e("s_add_u32 s24, s10, s40")
    e("s_addc_u32 s25, s11, 0")
    if vpat == 8:
        c("V lane offset: (l>>3)*384 + (l&7)*16")
        e("v_lshrrev_b32 v57, 3, v0")
        e("v_mul_u32_u24 v57, 384, v57")
        e("v_and_b32 v58, 7, v0")
    else:
        c("V lane offset: (l>>4)*768 + (l&15)*16")
        e("v_lshrrev_b32 v57, 4, v0")
        e("v_mul_u32_u24 v57, 768, v57")
        e("v_and_b32 v58, 15, v0")
    e("v_lshlrev_b32 v58, 4, v58")
    e("v_add3_u32 v%d, v57, v58, v56" % vVo)
    c("masks on lane bit 2")
    e("v_bfe_i32 v%d, v0, 2, 1                   ; -1 where bit2 set" % vM1)
    e("v_not_b32 v%d, v%d" % (vM0, vM1))
    e("v_mov_b32 v%d, 0xff800000                 ; m = -inf" % vM)
    e("v_mov_b32 v%d, 0" % vL)
    c("LDS address of this wave's score area: wave*16384 + lane*16")
    e("s_lshl_b32 s39, s%d, 14" % sWave)
    e("v_lshlrev_b32 v%d, 4, v0" % vSW)
    e("v_add_u32 v%d, s39, v%d" % (vSW, vSW))
    e("v_mov_b32 v%d, v%d" % (vSR, vSW))
    e("v_mov_b32 v63, v%d" % vSW)
    e("s_mov_b32 s%d, 0x%08x" % (sC, f32bits(192 ** -0.5 * math.log2(math.e))))
    if Re:
        c("vcc = all ones on even XCDs (selects the load window; speed only)")
        e("s_getreg_b32 s39, hwreg(HW_REG_XCC_ID)")
        e("s_and_b32 s39, s39, 1")
        e("s_cmp_eq_u32 s39, 0")
        e("s_cselect_b64 vcc, -1, 0")
    e("s_mov_b32 s%d, 0x05040100" % sSelLo)
    e("s_mov_b32 s%d, 0x07060302" % sSelHi)
    if not lateinit:
        for i in range(48):
            e("v_mov_b32 v%d, 0" % (ACC + i))
    e("v_ashrrev_i32 v57, 5, v0")
    e("v_sub_u32 v57, 0, v57")
    e("v_not_b32 v58, v57")
    e("s_mov_b32 s%d, 8" % sCnt)
    for n in range(NP, RM + 2):
        kstep(n)
    c("split the middle Q operand (its load is older than K load 2..): lanes<32 -> even keys, lanes>=32 -> odd keys")
    e("s_waitcnt vmcnt(%d)" % RM)
    for i in range(4):
        e("v_and_b32 v%d, v%d, v57" % (QB + 8 + i, QB + 4 + i))
    for i in range(4):
        e("v_and_b32 v%d, v%d, v58" % (QB + 4 + i, QB + 4 + i))
    if touch:
        c("address-translation warm-up: first and last line of this head's K and V, and the output line")
        e("v_mul_u32_u24 v57, %d, v0" % (HB - 128))
        e("s_mov_b64 exec, 3")
        e("s_cmp_eq_u32 s%d, 1" % sWave)
        e("s_cbranch_scc0 L_t1")
        e("buffer_load_dword v59, v57, s[16:19], 0 offen nt")
        lab("L_t1")
        e("s_cmp_eq_u32 s%d, 2" % sWave)
        e("s_cbranch_scc0 L_t2")
        e("buffer_load_dword v59, v57, s[20:23], 0 offen nt")
        lab("L_t2")
        e("s_cmp_eq_u32 s%d, 3" % sWave)
        e("s_cbranch_scc0 L_t3")
        e("buffer_load_dword v59, v57, s[24:27], 0 offen nt")
        lab("L_t3")
        e("s_mov_b64 exec, -1")
    stampit()
    e("s_branch L_kmid")

    lab("L_kloop")
    for o in range(24):
        if o == RM + 2:
            lab("L_kmid")
        kstep(o)
        kcompute(o)
    e("s_sub_u32 s%d, s%d, 1" % (sCnt, sCnt))
    e("s_cmp_lg_u32 s%d, 0" % sCnt)
    e("s_cbranch_scc1 L_kloop")
    stampit()

    c("---- transition: first V loads, K tail, final max ----")
    c0 = RM + 5
    for m in range(c0):
        vstep(m)
        if lateinit:
            if m < 8:
                for i in range(6 * m, 6 * m + 6):
                    e("v_mov_b32 v%d, 0" % (ACC + i))
        if m <= RM + 1:
            kcompute(m)
        elif m == RM + 2:
            e("v_max_f32_dpp v%d, v%d, v%d row_ror:8 row_mask:0xf bank_mask:0xf" % (vM, vM, vM))
            e("v_mov_b32 v%d, v%d" % (y, vM))
            e("s_nop 1")
            e("v_permlane16_swap_b32 v%d, v%d" % (vM, y))
        elif m == RM + 3:
            e("v_max_f32 v%d, v%d, v%d" % (vM, vM, y))
            e("v_mov_b32 v%d, v%d" % (y, vM))
            e("s_nop 1")
            e("v_permlane32_swap_b32 v%d, v%d" % (vM, y))
        else:
            e("v_max_f32 v%d, v%d, v%d                  ; true max over this wave's keys (per q = lane&3)" % (vM, vM, y))
            e("v_mul_f32 v%d, s%d, v%d                  ; m*c" % (MC, sC, vM))
    e("s_mov_b32 s%d, 7" % sCnt)

    lab("L_vloop")
    for k in range(24):
        vstep(c0 + k)
        half, kk = divmod(k, 12)
        base = 12 * half
        if kk == 0:
            e("ds_read_b128 %s, v%d offset:%d" % (vr(T, 4), vSR, 1024 * half))
            if half == 1:
                e("v_add_u32 v%d, 2048, v%d" % (vSR, vSR))
        elif kk == 1:
            e("s_waitcnt lgkmcnt(0)")
            prep_exp(T)
        elif kk == 2:
            prep_pack(T)
        elif kk == 3:
            prep_mask(AH0, AH1)
        elif kk >= 6:
            s, hh = divmod(kk - 6, 2)
            pv_perm(base, s, hh)
            pv_mfma(s, hh, AH0, AH1)
    e("s_sub_u32 s%d, s%d, 1" % (sCnt, sCnt))
    e("s_cmp_lg_u32 s%d, 0" % sCnt)
    e("s_cbranch_scc1 L_vloop")
    stampit()

    c("---- last two groups (14, 15): issue the remaining loads, group 15 in s-major order ----")
    m0 = 168 + c0
    e("ds_read_b128 %s, v%d" % (vr(T, 4), vSR))
    e("ds_read_b128 %s, v%d offset:1024" % (vr(T + 4, 4), vSR))
    wn = RB if burst else None
    work = []
    def w_exp14(): e("s_waitcnt lgkmcnt(1)"); prep_exp(T)
    def w_pack14(): prep_pack(T); prep_mask(AH0, AH1)
    def w_exp15(): e("s_waitcnt lgkmcnt(0)"); prep_exp(T + 4)
    def w_pack15(): prep_pack(T + 4); prep_mask(BH0, BH1)
    def w_l1():
        e("v_add_f32_dpp v%d, v%d, v%d row_ror:8 row_mask:0xf bank_mask:0xf" % (vL, vL, vL))
        e("v_mov_b32 v%d, v%d" % (y, vL))
        e("s_nop 1")
        e("v_permlane16_swap_b32 v%d, v%d" % (vL, y))
        e("s_nop 1")
        e("v_add_f32 v%d, v%d, v%d" % (vL, vL, y))
    def w_l2():
        e("v_mov_b32 v%d, v%d" % (y, vL))
        e("s_nop 1")
        e("v_permlane32_swap_b32 v%d, v%d" % (vL, y))
        e("s_nop 1")
        e("v_add_f32 v%d, v%d, v%d" % (vL, vL, y))
        c("m/l table: LDS_ML + ((l&3)*4 + wave)*4")
        e("v_and_b32 v%d, 3, v0" % z)
        e("v_lshlrev_b32 v%d, 4, v%d" % (z, z))
        e("s_lshl_b32 s38, s%d, 2" % sWave)
        e("s_add_u32 s38, s38, %d" % LDS_ML)
        e("v_add_u32 v%d, s38, v%d" % (z, z))
        e("ds_write_b32 v%d, v%d" % (z, vM))
        e("ds_write_b32 v%d, v%d offset:64" % (z, vL))
    def w_addr():
        c("output-side lane roles: q = 2*bit3 + bit5, h = bit4, c = l&7")
        e("v_bfe_u32 v8, v0, 3, 1")
        e("v_lshlrev_b32 v8, 1, v8")
        e("v_lshrrev_b32 v9, 5, v0")
        e("v_add_u32 v8, v8, v9                     ; q")
        e("v_lshlrev_b32 v9, 4, v8")
        e("v_add_u32 v11, s38, v9")
        e("v_add_u32 v9, %d, v9                  ; row of the m/l table" % LDS_ML)
        e("v_mul_u32_u24 v10, 384, v8")
        e("v_and_b32 v12, 7, v0")
        e("v_lshlrev_b32 v12, 4, v12")
        e("v_bfe_u32 v13, v0, 4, 1")
        e("v_lshlrev_b32 v13, 3, v13")
        e("v_add3_u32 v10, v10, v12, v13")
        e("s_lshl_b32 s39, s%d, 10" % sWave)
        e("v_lshlrev_b32 v12, 4, v0")
        e("v_add_u32 v12, s39, v12                  ; s*1024 + l*16")
        e("s_lshl_b32 s39, s%d, 7" % sWave)
    MW, LW = 16, 20
    def w_bar():
        e("s_waitcnt lgkmcnt(0)")
        e("s_barrier")
        e("ds_read_b128 %s, v9" % vr(MW, 4))
        e("ds_read_b128 %s, v9 offset:64" % vr(LW, 4))
        e("ds_read_b32 v14, v11")
    def w_f():
        c("scale factor f = exp2((m_own - M)*c) / L")
        e("s_waitcnt lgkmcnt(0)")
        e("v_max_f32 v13, v%d, v%d" % (MW, MW + 1))
        e("v_max3_f32 v13, v13, v%d, v%d" % (MW + 2, MW + 3))
        for w in range(W):
            e("v_sub_f32 v%d, v%d, v13" % (MW + w, MW + w))
        e("v_sub_f32 v14, v14, v13")
        for w in range(W):
            e("v_mul_f32 v%d, s%d, v%d" % (MW + w, sC, MW + w))
        e("v_mul_f32 v14, s%d, v14" % sC)
        for w in range(W):
            e("v_exp_f32 v%d, v%d" % (MW + w, MW + w))
        e("v_exp_f32 v14, v14")
        e("v_mul_f32 v15, v%d, v%d" % (MW, LW))
        for w in range(1, W):
            e("v_fmac_f32 v15, v%d, v%d" % (MW + w, LW + w))
        e("v_rcp_f32 v15, v15")
        e("s_nop 0")
        e("v_mul_f32 v%d, v14, v15" % FF)
    if burst == 2:
        done15 = [m - 180 for m in range(180, m0)]
        assert len(done15) <= 2
        order = [(s, u) for u in range(4) for s in range(2) if not (u == 0 and s in done15)] + [(2, u) for u in range(4)]
        steps = [("v", m) for m in range(m0, 180)] + [("g", su) for su in order]
        RT = RB if RB < 19 else None
        RW = RM if RT is None else max(RT, RM)
        first14 = min(179 + RW - m0, len(steps))
        pre = [[w_exp14], [w_pack14, w_exp15], [w_pack15, w_l1], [w_l2, w_addr], [w_bar], [w_f]]
        sl14 = [(s, hh) for s in range(3) for hh in range(2)]
        have_u = False
        for idx, (kind, a) in enumerate(steps):
            if kind == "v":
                vstep(a, RT)
            else:
                if not have_u:
                    e("s_mov_b32 s%d, s%d" % (sU, sVo))
                    for u in range(1, 4):
                        adv(sU + u - 1, sU + u)
                    have_u = True
                s, u = a
                if RT is None: window(m0 + idx)
                else: e("s_waitcnt vmcnt(%d)" % (RT - 1))
                e("buffer_load_dwordx4 %s, v%d, s[20:23], s%d offen offset:%d %s" % (vr(slot(12 + 3 * u + s), 4), vVo, sU + u, s * VS, flags))
            if pre:
                for f in pre.pop(0): f()
            elif idx >= first14 and sl14:
                s, hh = sl14.pop(0)
                pv_perm(0, s, hh)
                pv_mfma(s, hh, AH0, AH1)
        assert not pre
        if sl14:
            e("s_waitcnt vmcnt(%d)" % len(order))
            for s, hh in sl14:
                pv_perm(0, s, hh)
                pv_mfma(s, hh, AH0, AH1)
        lefts = [4, 4, 0]
    else:
        work = [w_exp14, w_pack14, w_exp15, w_pack15, w_l1, w_l2, w_addr]
        rem = list(range(m0, 180))
        for m in rem:
            vstep(m, wn)
        done15 = [m - 180 for m in range(180, m0)]
        assert len(done15) <= 2
        e("s_mov_b32 s%d, s%d" % (sU, sVo))
        for u in range(1, 4):
            adv(sU + u - 1, sU + u)
        order = [(s, u) for s in range(3) for u in range(4) if not (u == 0 and s in done15)]
        wi = 0
        for idx, (s, u) in enumerate(order):
            if burst: e("s_waitcnt vmcnt(%d)" % (RB - 1))
            else: e("s_waitcnt vmcnt(%d)" % (Rs[idx % len(Rs)] - 1))
            e("buffer_load_dwordx4 %s, v%d, s[20:23], s%d offen offset:%d %s" % (vr(slot(12 + 3 * u + s), 4), vVo, sU + u, s * VS, flags))
            if not burst and wi < len(work):
                work[wi](); wi += 1
        while wi < len(work):
            work[wi](); wi += 1
        w_bar()
        c("group 14 (all its loads are older than the group-15 loads issued above)")
        n15 = len(order)
        e("s_waitcnt vmcnt(%d)" % n15)
        for s in range(3):
            for hh in range(2):
                pv_perm(0, s, hh)
                pv_mfma(s, hh, AH0, AH1)
        w_f()
        lefts = [len([1 for (s2, u) in order if s2 > s]) for s in range(3)]
    c("group 15, one s at a time, each followed by the in-wave reduction of its accumulators")
    for s in range(3):
        e("s_waitcnt vmcnt(%d)" % lefts[s])
        if s == 2: stampit()
        pv_perm(12, s, 0)
        pv_mfma(s, 0, BH0, BH1)
        pv_perm(12, s, 1)
        pv_mfma(s, 1, BH0, BH1)
        e("s_nop 4")
        for i in range(4):
            a = ACC + 16 * s + 4 * i
            if i == 3: e("s_nop 0")
            e("v_permlane32_swap_b32 v%d, v%d" % (a, a + 1))
            e("v_permlane32_swap_b32 v%d, v%d" % (a + 2, a + 3))
        if vpat == 8:
            thirds = [(s, s, s, False)]
        else:
            thirds = {0: [], 1: [(0, 0, 1, False)], 2: [(1, 0, 2, True), (2, 1, 2, False)]}[s]
        for (t3, se, so, flip) in thirds:
            OUTR = 24 + 4 * (t3 & 1)
            for i in range(4):
                ae, ao = ACC + 16 * se + 4 * i, ACC + 16 * so + 4 * i
                if not flip: e("v_add_f32_dpp v%d, v%d, v%d row_ror:8 row_mask:0xf bank_mask:0x3" % (RR + i, ao + 1, ae))
                else:        e("v_add_f32_dpp v%d, v%d, v%d row_ror:8 row_mask:0xf bank_mask:0x3" % (RR + i, ae, ao + 1))
            for i in range(4):
                ae, ao = ACC + 16 * se + 4 * i, ACC + 16 * so + 4 * i
                if not flip: e("v_add_f32_dpp v%d, v%d, v%d row_ror:8 row_mask:0xf bank_mask:0xc" % (RR + i, ae + 2, ao + 3))
                else:        e("v_add_f32_dpp v%d, v%d, v%d row_ror:8 row_mask:0xf bank_mask:0xc" % (RR + i, ao + 3, ae + 2))
            for i in range(4):
                e("v_mul_f32 v%d, v%d, v%d" % (OUTR + i, RR + i, FF))
            e("ds_write_b128 v63, %s offset:%d" % (vr(OUTR, 4), t3 * 1024))
    e("s_waitcnt lgkmcnt(0)")
    stampit()
    e("s_barrier")
    e("s_cmp_ge_u32 s%d, 3" % sWave)
    e("s_cbranch_scc1 L_fin")
    PART = FR
    for w in range(W):
        e("ds_read_b128 %s, v12 offset:%d" % (vr(PART + 4 * w, 4), w * 16384))
    e("s_waitcnt lgkmcnt(2)")
    for i in range(4):
        e("v_add_f32 v%d, v%d, v%d" % (PART + i, PART + i, PART + 4 + i))
    e("s_waitcnt lgkmcnt(0)")
    for i in range(4):
        e("v_add_f32 v%d, v%d, v%d" % (PART + 8 + i, PART + 8 + i, PART + 12 + i))
    for i in range(4):
        e("v_add_f32 v%d, v%d, v%d" % (PART + i, PART + i, PART + 8 + i))
    e("v_cvt_pk_bf16_f32 v20, v%d, v%d" % (PART, PART + 1))
    e("v_cvt_pk_bf16_f32 v21, v%d, v%d" % (PART + 2, PART + 3))
    e("buffer_store_dwordx2 v[20:21], v10, s[24:27], s39 offen")
    lab("L_fin")
    if stamp:
        stampit()
        e("s_waitcnt vmcnt(0)")
        stampit()
        e("s_memtime s[78:79]")
        n = nst[0]
        assert n <= 13
        e("s_load_dwordx2 s[44:45], s[0:1], 40")
        e("s_getreg_b32 s41, hwreg(HW_REG_XCC_ID)")
        e("s_mul_i32 s46, s2, %d" % W)
        e("s_add_u32 s46, s46, s%d" % sWave)
        e("s_lshl_b32 s46, s46, 6")
        e("v_mov_b32 v3, s46")
        e("s_waitcnt lgkmcnt(0)")
        for i in range(16):
            if i < n: e("v_mov_b32 v%d, s%d" % (8 + i, ST + 2 * i))
            elif i == 13:
                e("s_sub_u32 s76, s78, s76")
                e("v_mov_b32 v%d, s76" % (8 + i))
            elif i == 14: e("v_mov_b32 v%d, s41" % (8 + i))
            else: e("v_mov_b32 v%d, %d" % (8 + i, n))
        e("s_mov_b64 exec, 1")
        for i in range(4):
            e("global_store_dwordx4 v3, v[%d:%d], s[44:45] offset:%d" % (8 + 4 * i, 11 + 4 * i, 16 * i))
    lab("L_done")
    e("s_endpgm")

    out = HEADER
    out += "; Generated by gen/gen4.py (R=%s rot=%d flags=%s burst=%d RB=%d R0=%d hmap=%d touch=%d vpat=%d Re=%s)\n" % (R, rot, flags, burst, RB, R0, hmap, touch, vpat, Re)
    out += "; @launch grid=(256,1,1) block=(%d,1,1) lds=%d\n" % (W * 64, LDS)
    out += '.amdgcn_target "amdgcn-amd-amdhsa--gfx950"\n.text\n.globl %s_kernel\n.p2align 8\n.type %s_kernel,@function\n%s_kernel:\n' % (NAME, NAME, NAME)
    out += "\n".join(L) + "\n"
    out += """.section .rodata,"a"
.p2align 6
.amdhsa_kernel %s_kernel
  .amdhsa_next_free_vgpr %d
  .amdhsa_next_free_sgpr %d
  .amdhsa_accum_offset %d
  .amdhsa_group_segment_fixed_size 0
  .amdhsa_kernarg_size 48
  .amdhsa_user_sgpr_count 2
  .amdhsa_user_sgpr_kernarg_segment_ptr 1
  .amdhsa_system_sgpr_workgroup_id_x 1
.end_amdhsa_kernel
""" % (NAME, NV, 84 if stamp else 48, NV)
    return out

if __name__ == "__main__":
    path = sys.argv[1]
    kw = {}
    for a in sys.argv[2:]:
        k, v = a.split("=")
        kw[k] = int(v) if (v.isdigit() and k not in ("R", "Re")) else v
    open(path, "w").write(gen(**kw))
```

```python
import sys, math, struct

NAME = "standalone__mha_softmax__sampling"
HEADER = open("cdna_kernels/%s.s.ref" % NAME).read().split("; Override launch")[0]

def f32bits(x):
    return struct.unpack("<I", struct.pack("<f", x))[0]

def gen(R="6", rot=56, flags="nt", stamp=0, ldsmin=0, burst=1, RB=19, R0=0, hmap=0, touch=0, cpf=0, lateinit=0, vpat=8, qdiag=0, Re="", oflags=""):
    VS = 128 if vpat == 8 else 256
    W = 4
    Rs = [int(x) for x in str(R).split("x")]
    Res = [int(x) for x in str(Re).split("x")] if Re else Rs
    RM = max(Rs + Res)
    assert RM <= 9 and 24 % len(Rs) == 0 and 24 % len(Res) == 0
    nlab = [0]
    L = []
    def e(s): L.append("    " + s)
    def lab(s): L.append(s + ":")
    def c(s): L.append("    ; " + s)
    HB = 786432
    LDS_ML = 65536
    LDS = max(LDS_ML + 2 * 4 * W * 4, ldsmin)
    vKo, vVo, vM0, vM1, vM, vL, vSW, vSR = 1, 2, 3, 4, 5, 6, 7, 62
    QB = 8
    T = 24
    EE, OO = 32, 36
    PF, AH0, AH1 = 40, 42, 44
    MC = 46
    FF = 47
    TMP = 48
    FR = 64
    ACC = 80
    RING = 128
    NV = 224
    BH0, BH1 = 32, 34
    RR = 36
    sWave, sKo, sVo, sCnt, sC, sSelLo, sSelHi = 28, 29, 30, 34, 35, 36, 37
    sU = 42
    ST = 48
    nst = [0]
    def stampit():
        if not stamp: return
        i = nst[0]; nst[0] += 1
        e("s_memrealtime s[%d:%d]" % (ST + 2 * i, ST + 2 * i + 1))
    def vr(b, n): return "v[%d:%d]" % (b, b + n - 1)
    def slot(i): return RING + 4 * (i % 24)
    USTEP, WOFF, SPAN = 12288, 3072, HB

    def window(n):
        ro, re_ = Rs[n % len(Rs)], Res[n % len(Res)]
        e("s_waitcnt vmcnt(%d)" % (max(ro, re_) - 1))
        if ro != re_:
            nlab[0] += 1
            e("s_cbranch_vcc%s L_w%d" % ("nz" if re_ > ro else "z", nlab[0]))
            e("s_waitcnt vmcnt(%d)" % (min(ro, re_) - 1))
            lab("L_w%d" % nlab[0])
    def adv(sreg, dst=None):
        dst = sreg if dst is None else dst
        e("s_add_u32 s%d, s%d, %d" % (dst, sreg, USTEP))
        e("s_cmp_eq_u32 s%d, %d" % (dst, SPAN))
        e("s_cselect_b32 s%d, 0, s%d" % (dst, dst))
    def kstep(n, wait=True):
        s = n % 3
        if wait: window(n)
        e("buffer_load_dwordx4 %s, v%d, s[16:19], s%d offen offset:%d %s" % (vr(slot(n), 4), vKo, sKo, s * 256, flags))
        if s == 2: adv(sKo)
    def vstep(m, wait=None):
        s = m % 3
        if wait is None: window(m)
        else: e("s_waitcnt vmcnt(%d)" % (wait - 1))
        e("buffer_load_dwordx4 %s, v%d, s[20:23], s%d offen offset:%d %s" % (vr(slot(m), 4), vVo, sVo, s * VS, flags))
        if s == 2: adv(sVo)

    def kcompute(o):
        x = o - (2 + RM)
        j, ph = (x // 3) % 8, x % 3
        t = T + j
        if ph == 0:
            e("v_mfma_f32_16x16x32_bf16 %s, %s, %s, 0" % (vr(EE, 4), vr(slot(3 * j), 4), vr(QB, 4)))
            e("v_mfma_f32_16x16x32_bf16 %s, %s, %s, %s" % (vr(EE, 4), vr(slot(3 * j + 1), 4), vr(QB + 4, 4), vr(EE, 4)))
            e("v_mfma_f32_16x16x32_bf16 %s, %s, %s, 0" % (vr(OO, 4), vr(slot(3 * j + 1), 4), vr(QB + 8, 4)))
            e("v_mfma_f32_16x16x32_bf16 %s, %s, %s, %s" % (vr(OO, 4), vr(slot(3 * j + 2), 4), vr(QB + 12, 4), vr(OO, 4)))
        elif ph == 1:
            e("s_nop 3")
            e("v_add_f32_dpp v%d, v%d, v%d row_shl:4 row_mask:0xf bank_mask:0x1" % (t, EE + 1, EE))
            e("s_nop 1")
            e("v_add_f32_dpp v%d, v%d, v%d row_shl:8 row_mask:0xf bank_mask:0x1" % (t, EE + 2, t))
            e("s_nop 1")
            e("v_add_f32_dpp v%d, v%d, v%d row_shl:12 row_mask:0xf bank_mask:0x1" % (t, EE + 3, t))
        else:
            e("v_add_f32_dpp v%d, v%d, v%d row_shr:8 row_mask:0xf bank_mask:0x4" % (t, OO, OO + 2))
            e("s_nop 1")
            e("v_add_f32_dpp v%d, v%d, v%d row_shr:4 row_mask:0xf bank_mask:0x4" % (t, OO + 1, t))
            e("s_nop 1")
            e("v_add_f32_dpp v%d, v%d, v%d row_shl:4 row_mask:0xf bank_mask:0x4" % (t, OO + 3, t))
            e("s_nop 1")
            e("v_mov_b32_dpp v%d, v%d row_shr:4 row_mask:0xf bank_mask:0xa" % (t, t))
            if j % 4 == 3:
                b = T + j - 3
                e("ds_write_b128 v%d, %s" % (vSW, vr(b, 4)))
                e("v_add_u32 v%d, 1024, v%d" % (vSW, vSW))
                e("v_max3_f32 v%d, v%d, v%d, v%d" % (vM, vM, b, b + 1))
                e("v_max3_f32 v%d, v%d, v%d, v%d" % (vM, vM, b + 2, b + 3))
    x, y, z = TMP, TMP + 1, TMP + 2
    def prep_exp(t):
        for u in range(4):
            e("v_fma_f32 v%d, v%d, s%d, -v%d" % (t + u, t + u, sC, MC))
        for u in range(4):
            e("v_exp_f32 v%d, v%d" % (t + u, t + u))
    def prep_pack(t):
        e("v_cvt_pk_bf16_f32 v%d, v%d, v%d" % (PF, t, t + 1))
        e("v_cvt_pk_bf16_f32 v%d, v%d, v%d" % (PF + 1, t + 2, t + 3))
        e("v_add_f32 v%d, v%d, v%d" % (x, t, t + 1))
        e("v_add_f32 v%d, v%d, v%d" % (y, t + 2, t + 3))
        e("v_add_f32 v%d, v%d, v%d" % (x, x, y))
        e("v_add_f32 v%d, v%d, v%d" % (vL, vL, x))
    def prep_mask(h0, h1):
        for p in range(2):
            e("v_and_b32 v%d, v%d, v%d" % (h0 + p, PF + p, vM0))
            e("v_and_b32 v%d, v%d, v%d" % (h1 + p, PF + p, vM1))
    def pv_perm(base, s, hh):
        fr = FR + 8 * hh
        for i in range(4):
            ee = 4 * hh + i
            tt, hi = ee >> 1, ee & 1
            for p in range(2):
                e("v_perm_b32 v%d, v%d, v%d, s%d" % (fr + 2 * i + p, slot(base + 3 * (2 * p + 1) + s) + tt, slot(base + 3 * (2 * p) + s) + tt, sSelHi if hi else sSelLo))
    def pv_mfma(s, hh, h0, h1):
        fr = FR + 8 * hh
        for i in range(4):
            a = ACC + 16 * s + 4 * i
            e("v_mfma_f32_16x16x16_bf16 %s, %s, %s, %s" % (vr(a, 4), vr(h1 if hh else h0, 2), vr(fr + 2 * i, 2), vr(a, 4)))

    c("uniform exit for extra workgroups")
    e("s_cmp_ge_u32 s2, 256")
    e("s_cbranch_scc1 L_done")
    e("s_load_dwordx8 s[4:11], s[0:1], 0        ; q, k, v, out")
    stampit()
    if stamp: e("s_memtime s[76:77]")
    if hmap:
        c("head = (wg&7)*32 + (wg>>3): the heads of one XCD are contiguous in memory (fewer pages per XCD)")
        e("s_and_b32 s38, s2, 7")
        e("s_lshl_b32 s38, s38, 5")
        e("s_lshr_b32 s39, s2, 3")
        e("s_or_b32 s3, s38, s39")
    else:
        e("s_mov_b32 s3, s2")
    c("lane decomposition")
    e("v_lshrrev_b32 v56, 6, v0")
    e("v_and_b32 v0, 63, v0                     ; lane")
    e("v_readfirstlane_b32 s%d, v56" % sWave)
    e("v_mul_u32_u24 v56, %d, v56               ; wave byte offset" % WOFF)
    c("K lane offset: m*768 + g*64 + v*16, m=(l>>2)&3, v=l&3, g=l>>4")
    e("v_bfe_u32 v57, v0, 2, 2")
    e("v_mul_u32_u24 v57, 768, v57")
    e("v_lshrrev_b32 v58, 4, v0")
    e("v_lshlrev_b32 v58, 6, v58")
    e("v_and_b32 v59, 3, v0")
    e("v_lshlrev_b32 v60, 4, v59")
    e("v_add3_u32 v%d, v57, v58, v60" % vKo)
    e("v_add_u32 v%d, v%d, v56" % (vKo, vKo))
    c("Q lane offsets: (l&3)*384 + (l>>2)*16 ; middle operand: lanes<32 +256, lanes>=32 -128")
    e("v_mul_u32_u24 v59, 384, v59")
    e("v_lshrrev_b32 v58, 2, v0")
    e("v_lshlrev_b32 v58, 4, v58")
    e("v_add_u32 v61, v59, v58")
    e("v_lshrrev_b32 v58, 5, v0")
    e("v_mul_u32_u24 v58, 384, v58")
    e("v_sub_u32 v55, v61, v58")
    e("s_mul_i32 s38, s3, %d                ; head byte offset (K,V), < 2^28" % HB)
    e("s_mul_i32 s40, s3, 1536")
    e("s_mov_b32 s14, 1536")
    e("s_mov_b32 s15, 0x20000")
    e("s_mov_b32 s18, %d" % HB)
    e("s_mov_b32 s19, 0x20000")
    c("rotated start unit")
    e("s_mul_i32 s39, s3, %d" % rot)
    e("s_and_b32 s39, s39, 63")
    e("s_mul_i32 s%d, s39, %d" % (sKo, USTEP))
    e("s_mov_b32 s%d, s%d" % (sVo, sKo))
    e("v_add_u32 v55, 256, v55")
    e("s_waitcnt lgkmcnt(0)")
    stampit()
    e("s_add_u32 s12, s4, s40")
    e("s_addc_u32 s13, s5, 0")
    e("s_add_u32 s16, s6, s38")
    e("s_addc_u32 s17, s7, 0")
    if qdiag == 1:
        kstep(0, wait=False)
        e("s_waitcnt vmcnt(0)")
        stampit()
        e("buffer_load_dwordx4 %s, v61, s[12:15], 0 offen" % vr(QB, 4))
        e("s_waitcnt vmcnt(0)")
        stampit()
        e("buffer_load_dwordx4 %s, v55, s[12:15], 0 offen" % vr(QB + 4, 4))
        kstep(1, wait=False)
        e("s_waitcnt vmcnt(0)")
        stampit()
        e("buffer_load_dwordx4 %s, v61, s[12:15], 0 offen offset:128" % vr(QB + 12, 4))
    elif qdiag == 2:
        e("buffer_load_dwordx4 %s, v61, s[12:15], 0 offen" % vr(QB, 4))
        kstep(0, wait=False)
        e("s_waitcnt vmcnt(1)")
        stampit()
        e("s_waitcnt vmcnt(0)")
        stampit()
        e("buffer_load_dwordx4 %s, v55, s[12:15], 0 offen" % vr(QB + 4, 4))
        kstep(1, wait=False)
        e("s_waitcnt vmcnt(0)")
        stampit()
        e("buffer_load_dwordx4 %s, v61, s[12:15], 0 offen offset:128" % vr(QB + 12, 4))
    else:
        e("buffer_load_dwordx4 %s, v61, s[12:15], 0 offen" % vr(QB, 4))
        kstep(0, wait=False)
        e("buffer_load_dwordx4 %s, v55, s[12:15], 0 offen" % vr(QB + 4, 4))
        kstep(1, wait=False)
        e("buffer_load_dwordx4 %s, v61, s[12:15], 0 offen offset:128" % vr(QB + 12, 4))
    NP = max(RM, R0)
    assert NP <= RM + 2
    for n in range(2, NP):
        kstep(n, wait=False)
    if cpf:
        c("pull the rest of this kernel's code into L2 (one line per lane), wave 3 only")
        e("s_cmp_lg_u32 s%d, 3" % sWave)
        e("s_cbranch_scc1 L_nopf")
        e("s_getpc_b64 s[46:47]")
        lab("L_pf")
        e("v_lshlrev_b32 v57, 7, v0")
        e("v_min_u32 v57, L_done-L_pf, v57")
        e("global_load_dword v59, v57, s[46:47]")
        lab("L_nopf")
    e("s_mov_b32 s22, %d" % HB)
    e("s_mov_b32 s23, 0x20000")
    e("s_mov_b32 s26, 1536")
    e("s_mov_b32 s27, 0x20000")
    e("s_add_u32 s20, s8, s38")
    e("s_addc_u32 s21, s9, 0")
    e("s_add_u32 s24, s10, s40")
    e("s_addc_u32 s25, s11, 0")
    if vpat == 8:
        c("V lane offset: (l>>3)*384 + (l&7)*16")
        e("v_lshrrev_b32 v57, 3, v0")
        e("v_mul_u32_u24 v57, 384, v57")
        e("v_and_b32 v58, 7, v0")
    else:
        c("V lane offset: (l>>4)*768 + (l&15)*16")
        e("v_lshrrev_b32 v57, 4, v0")
        e("v_mul_u32_u24 v57, 768, v57")
        e("v_and_b32 v58, 15, v0")
    e("v_lshlrev_b32 v58, 4, v58")
    e("v_add3_u32 v%d, v57, v58, v56" % vVo)
    c("masks on lane bit 2")
    e("v_bfe_i32 v%d, v0, 2, 1                   ; -1 where bit2 set" % vM1)
    e("v_not_b32 v%d, v%d" % (vM0, vM1))
    e("v_mov_b32 v%d, 0xff800000                 ; m = -inf" % vM)
    e("v_mov_b32 v%d, 0" % vL)
    c("LDS address of this wave's score area: wave*16384 + lane*16")
    e("s_lshl_b32 s39, s%d, 14" % sWave)
    e("v_lshlrev_b32 v%d, 4, v0" % vSW)
    e("v_add_u32 v%d, s39, v%d" % (vSW, vSW))
    e("v_mov_b32 v%d, v%d" % (vSR, vSW))
    e("v_mov_b32 v63, v%d" % vSW)
    e("s_mov_b32 s%d, 0x%08x" % (sC, f32bits(192 ** -0.5 * math.log2(math.e))))
    if Re:
        c("vcc = all ones on even XCDs (selects the load window; speed only)")
        e("s_getreg_b32 s39, hwreg(HW_REG_XCC_ID)")
        e("s_and_b32 s39, s39, 1")
        e("s_cmp_eq_u32 s39, 0")
        e("s_cselect_b64 vcc, -1, 0")
    e("s_mov_b32 s%d, 0x05040100" % sSelLo)
    e("s_mov_b32 s%d, 0x07060302" % sSelHi)
    if not lateinit:
        for i in range(48):
            e("v_mov_b32 v%d, 0" % (ACC + i))
    e("v_ashrrev_i32 v57, 5, v0")
    e("v_sub_u32 v57, 0, v57")
    e("v_not_b32 v58, v57")
    e("s_mov_b32 s%d, 8" % sCnt)
    for n in range(NP, RM + 2):
        kstep(n)
    c("split the middle Q operand (its load is older than K load 2..): lanes<32 -> even keys, lanes>=32 -> odd keys")
    e("s_waitcnt vmcnt(%d)" % RM)
    for i in range(4):
        e("v_and_b32 v%d, v%d, v57" % (QB + 8 + i, QB + 4 + i))
    for i in range(4):
        e("v_and_b32 v%d, v%d, v58" % (QB + 4 + i, QB + 4 + i))
    if touch:
        c("address-translation warm-up: first and last line of this head's V (and K) range")
        e("v_mul_u32_u24 v57, %d, v0" % (HB - 128))
        e("s_mov_b64 exec, 3")
        if touch & 1:
            e("s_cmp_eq_u32 s%d, 1" % sWave)
            e("s_cbranch_scc0 L_t1")
            e("buffer_load_dword v59, v57, s[16:19], 0 offen nt")
            lab("L_t1")
        if touch & 2:
            e("s_cmp_eq_u32 s%d, 2" % sWave)
            e("s_cbranch_scc0 L_t2")
            e("buffer_load_dword v59, v57, s[20:23], 0 offen nt")
            lab("L_t2")
        e("s_mov_b64 exec, -1")
    stampit()
    e("s_branch L_kmid")

    lab("L_kloop")
    for o in range(24):
        if o == RM + 2:
            lab("L_kmid")
        kstep(o)
        kcompute(o)
    e("s_sub_u32 s%d, s%d, 1" % (sCnt, sCnt))
    e("s_cmp_lg_u32 s%d, 0" % sCnt)
    e("s_cbranch_scc1 L_kloop")
    stampit()

    c("---- transition: first V loads, K tail, final max ----")
    c0 = RM + 5
    for m in range(c0):
        vstep(m)
        if lateinit:
            if m < 8:
                for i in range(6 * m, 6 * m + 6):
                    e("v_mov_b32 v%d, 0" % (ACC + i))
        if m <= RM + 1:
            kcompute(m)
        elif m == RM + 2:
            e("v_max_f32_dpp v%d, v%d, v%d row_ror:8 row_mask:0xf bank_mask:0xf" % (vM, vM, vM))
            e("v_mov_b32 v%d, v%d" % (y, vM))
            e("s_nop 1")
            e("v_permlane16_swap_b32 v%d, v%d" % (vM, y))
        elif m == RM + 3:
            e("v_max_f32 v%d, v%d, v%d" % (vM, vM, y))
            e("v_mov_b32 v%d, v%d" % (y, vM))
            e("s_nop 1")
            e("v_permlane32_swap_b32 v%d, v%d" % (vM, y))
        else:
            e("v_max_f32 v%d, v%d, v%d                  ; true max over this wave's keys (per q = lane&3)" % (vM, vM, y))
            e("v_mul_f32 v%d, s%d, v%d                  ; m*c" % (MC, sC, vM))
    e("s_mov_b32 s%d, 7" % sCnt)

    lab("L_vloop")
    for k in range(24):
        vstep(c0 + k)
        half, kk = divmod(k, 12)
        base = 12 * half
        if kk == 0:
            e("ds_read_b128 %s, v%d offset:%d" % (vr(T, 4), vSR, 1024 * half))
            if half == 1:
                e("v_add_u32 v%d, 2048, v%d" % (vSR, vSR))
        elif kk == 1:
            e("s_waitcnt lgkmcnt(0)")
            prep_exp(T)
        elif kk == 2:
            prep_pack(T)
        elif kk == 3:
            prep_mask(AH0, AH1)
        elif kk >= 6:
            s, hh = divmod(kk - 6, 2)
            pv_perm(base, s, hh)
            pv_mfma(s, hh, AH0, AH1)
    e("s_sub_u32 s%d, s%d, 1" % (sCnt, sCnt))
    e("s_cmp_lg_u32 s%d, 0" % sCnt)
    e("s_cbranch_scc1 L_vloop")
    stampit()

    c("---- last two groups (14, 15): issue the remaining loads, group 15 in s-major order ----")
    m0 = 168 + c0
    e("ds_read_b128 %s, v%d" % (vr(T, 4), vSR))
    e("ds_read_b128 %s, v%d offset:1024" % (vr(T + 4, 4), vSR))
    wn = RB if burst else None
    work = []
    def w_exp14(): e("s_waitcnt lgkmcnt(1)"); prep_exp(T)
    def w_pack14(): prep_pack(T); prep_mask(AH0, AH1)
    def w_exp15(): e("s_waitcnt lgkmcnt(0)"); prep_exp(T + 4)
    def w_pack15(): prep_pack(T + 4); prep_mask(BH0, BH1)
    def w_l1():
        e("v_add_f32_dpp v%d, v%d, v%d row_ror:8 row_mask:0xf bank_mask:0xf" % (vL, vL, vL))
        e("v_mov_b32 v%d, v%d" % (y, vL))
        e("s_nop 1")
        e("v_permlane16_swap_b32 v%d, v%d" % (vL, y))
        e("s_nop 1")
        e("v_add_f32 v%d, v%d, v%d" % (vL, vL, y))
    def w_l2():
        e("v_mov_b32 v%d, v%d" % (y, vL))
        e("s_nop 1")
        e("v_permlane32_swap_b32 v%d, v%d" % (vL, y))
        e("s_nop 1")
        e("v_add_f32 v%d, v%d, v%d" % (vL, vL, y))
        c("m/l table: LDS_ML + ((l&3)*4 + wave)*4")
        e("v_and_b32 v%d, 3, v0" % z)
        e("v_lshlrev_b32 v%d, 4, v%d" % (z, z))
        e("s_lshl_b32 s38, s%d, 2" % sWave)
        e("s_add_u32 s38, s38, %d" % LDS_ML)
        e("v_add_u32 v%d, s38, v%d" % (z, z))
        e("ds_write_b32 v%d, v%d" % (z, vM))
        e("ds_write_b32 v%d, v%d offset:64" % (z, vL))
    def w_addr():
        c("output-side lane roles: q = 2*bit3 + bit5, h = bit4, c = l&7")
        e("v_bfe_u32 v8, v0, 3, 1")
        e("v_lshlrev_b32 v8, 1, v8")
        e("v_lshrrev_b32 v9, 5, v0")
        e("v_add_u32 v8, v8, v9                     ; q")
        e("v_lshlrev_b32 v9, 4, v8")
        e("v_add_u32 v11, s38, v9")
        e("v_add_u32 v9, %d, v9                  ; row of the m/l table" % LDS_ML)
        e("v_mul_u32_u24 v10, 384, v8")
        e("v_and_b32 v12, 7, v0")
        e("v_lshlrev_b32 v12, 4, v12")
        e("v_bfe_u32 v13, v0, 4, 1")
        e("v_lshlrev_b32 v13, 3, v13")
        e("v_add3_u32 v10, v10, v12, v13")
        e("s_lshl_b32 s39, s%d, 10" % sWave)
        e("v_lshlrev_b32 v12, 4, v0")
        e("v_add_u32 v12, s39, v12                  ; s*1024 + l*16")
        e("s_lshl_b32 s39, s%d, 7" % sWave)
    MW, LW = 16, 20
    def w_bar():
        e("s_waitcnt lgkmcnt(0)")
        e("s_barrier")
        e("ds_read_b128 %s, v9" % vr(MW, 4))
        e("ds_read_b128 %s, v9 offset:64" % vr(LW, 4))
        e("ds_read_b32 v14, v11")
    def w_f():
        c("scale factor f = exp2((m_own - M)*c) / L")
        e("s_waitcnt lgkmcnt(0)")
        e("v_max_f32 v13, v%d, v%d" % (MW, MW + 1))
        e("v_max3_f32 v13, v13, v%d, v%d" % (MW + 2, MW + 3))
        for w in range(W):
            e("v_sub_f32 v%d, v%d, v13" % (MW + w, MW + w))
        e("v_sub_f32 v14, v14, v13")
        for w in range(W):
            e("v_mul_f32 v%d, s%d, v%d" % (MW + w, sC, MW + w))
        e("v_mul_f32 v14, s%d, v14" % sC)
        for w in range(W):
            e("v_exp_f32 v%d, v%d" % (MW + w, MW + w))
        e("v_exp_f32 v14, v14")
        e("v_mul_f32 v15, v%d, v%d" % (MW, LW))
        for w in range(1, W):
            e("v_fmac_f32 v15, v%d, v%d" % (MW + w, LW + w))
        e("v_rcp_f32 v15, v15")
        e("s_nop 0")
        e("v_mul_f32 v%d, v14, v15" % FF)
    if burst == 2:
        done15 = [m - 180 for m in range(180, m0)]
        assert len(done15) <= 2
        order = [(s, u) for u in range(4) for s in range(2) if not (u == 0 and s in done15)] + [(2, u) for u in range(4)]
        steps = [("v", m) for m in range(m0, 180)] + [("g", su) for su in order]
        RT = RB if RB < 19 else None
        RW = RM if RT is None else max(RT, RM)
        first14 = min(179 + RW - m0, len(steps))
        pre = [[w_exp14], [w_pack14, w_exp15], [w_pack15, w_l1], [w_l2, w_addr], [w_bar], [w_f]]
        sl14 = [(s, hh) for s in range(3) for hh in range(2)]
        have_u = False
        for idx, (kind, a) in enumerate(steps):
            if kind == "v":
                vstep(a, RT)
            else:
                if not have_u:
                    e("s_mov_b32 s%d, s%d" % (sU, sVo))
                    for u in range(1, 4):
                        adv(sU + u - 1, sU + u)
                    have_u = True
                s, u = a
                if RT is None: window(m0 + idx)
                else: e("s_waitcnt vmcnt(%d)" % (RT - 1))
                e("buffer_load_dwordx4 %s, v%d, s[20:23], s%d offen offset:%d %s" % (vr(slot(12 + 3 * u + s), 4), vVo, sU + u, s * VS, flags))
            if pre:
                for f in pre.pop(0): f()
            elif idx >= first14 and sl14:
                s, hh = sl14.pop(0)
                pv_perm(0, s, hh)
                pv_mfma(s, hh, AH0, AH1)
        assert not pre
        if sl14:
            e("s_waitcnt vmcnt(%d)" % len(order))
            for s, hh in sl14:
                pv_perm(0, s, hh)
                pv_mfma(s, hh, AH0, AH1)
        lefts = [4, 4, 0]
    else:
        work = [w_exp14, w_pack14, w_exp15, w_pack15, w_l1, w_l2, w_addr]
        rem = list(range(m0, 180))
        for m in rem:
            vstep(m, wn)
        done15 = [m - 180 for m in range(180, m0)]
        assert len(done15) <= 2
        e("s_mov_b32 s%d, s%d" % (sU, sVo))
        for u in range(1, 4):
            adv(sU + u - 1, sU + u)
        order = [(s, u) for s in range(3) for u in range(4) if not (u == 0 and s in done15)]
        wi = 0
        for idx, (s, u) in enumerate(order):
            if burst: e("s_waitcnt vmcnt(%d)" % (RB - 1))
            else: e("s_waitcnt vmcnt(%d)" % (Rs[idx % len(Rs)] - 1))
            e("buffer_load_dwordx4 %s, v%d, s[20:23], s%d offen offset:%d %s" % (vr(slot(12 + 3 * u + s), 4), vVo, sU + u, s * VS, flags))
            if not burst and wi < len(work):
                work[wi](); wi += 1
        while wi < len(work):
            work[wi](); wi += 1
        w_bar()
        c("group 14 (all its loads are older than the group-15 loads issued above)")
        n15 = len(order)
        e("s_waitcnt vmcnt(%d)" % n15)
        for s in range(3):
            for hh in range(2):
                pv_perm(0, s, hh)
                pv_mfma(s, hh, AH0, AH1)
        w_f()
        lefts = [len([1 for (s2, u) in order if s2 > s]) for s in range(3)]
    c("group 15, one s at a time, each followed by the in-wave reduction of its accumulators")
    for s in range(3):
        e("s_waitcnt vmcnt(%d)" % lefts[s])
        if s == 2: stampit()
        pv_perm(12, s, 0)
        pv_mfma(s, 0, BH0, BH1)
        pv_perm(12, s, 1)
        pv_mfma(s, 1, BH0, BH1)
        e("s_nop 4")
        for i in range(4):
            a = ACC + 16 * s + 4 * i
            if i == 3: e("s_nop 0")
            e("v_permlane32_swap_b32 v%d, v%d" % (a, a + 1))
            e("v_permlane32_swap_b32 v%d, v%d" % (a + 2, a + 3))
        if vpat == 8:
            thirds = [(s, s, s, False)]
        else:
            thirds = {0: [], 1: [(0, 0, 1, False)], 2: [(1, 0, 2, True), (2, 1, 2, False)]}[s]
        for (t3, se, so, flip) in thirds:
            OUTR = 24 + 4 * (t3 & 1)
            for i in range(4):
                ae, ao = ACC + 16 * se + 4 * i, ACC + 16 * so + 4 * i
                if not flip: e("v_add_f32_dpp v%d, v%d, v%d row_ror:8 row_mask:0xf bank_mask:0x3" % (RR + i, ao + 1, ae))
                else:        e("v_add_f32_dpp v%d, v%d, v%d row_ror:8 row_mask:0xf bank_mask:0x3" % (RR + i, ae, ao + 1))
            for i in range(4):
                ae, ao = ACC + 16 * se + 4 * i, ACC + 16 * so + 4 * i
                if not flip: e("v_add_f32_dpp v%d, v%d, v%d row_ror:8 row_mask:0xf bank_mask:0xc" % (RR + i, ae + 2, ao + 3))
                else:        e("v_add_f32_dpp v%d, v%d, v%d row_ror:8 row_mask:0xf bank_mask:0xc" % (RR + i, ao + 3, ae + 2))
            for i in range(4):
                e("v_mul_f32 v%d, v%d, v%d" % (OUTR + i, RR + i, FF))
            e("ds_write_b128 v63, %s offset:%d" % (vr(OUTR, 4), t3 * 1024))
    e("s_waitcnt lgkmcnt(0)")
    stampit()
    e("s_barrier")
    e("s_cmp_ge_u32 s%d, 3" % sWave)
    e("s_cbranch_scc1 L_fin")
    PART = FR
    for w in range(W):
        e("ds_read_b128 %s, v12 offset:%d" % (vr(PART + 4 * w, 4), w * 16384))
    e("s_waitcnt lgkmcnt(2)")
    for i in range(4):
        e("v_add_f32 v%d, v%d, v%d" % (PART + i, PART + i, PART + 4 + i))
    e("s_waitcnt lgkmcnt(0)")
    for i in range(4):
        e("v_add_f32 v%d, v%d, v%d" % (PART + 8 + i, PART + 8 + i, PART + 12 + i))
    for i in range(4):
        e("v_add_f32 v%d, v%d, v%d" % (PART + i, PART + i, PART + 8 + i))
    e("v_cvt_pk_bf16_f32 v20, v%d, v%d" % (PART, PART + 1))
    e("v_cvt_pk_bf16_f32 v21, v%d, v%d" % (PART + 2, PART + 3))
    e("buffer_store_dwordx2 v[20:21], v10, s[24:27], s39 offen %s" % oflags)
    lab("L_fin")
    if stamp:
        stampit()
        e("s_waitcnt vmcnt(0)")
        stampit()
        e("s_memtime s[78:79]")
        n = nst[0]
        assert n <= 13
        e("s_load_dwordx2 s[44:45], s[0:1], 40")
        e("s_getreg_b32 s41, hwreg(HW_REG_XCC_ID)")
        e("s_mul_i32 s46, s2, %d" % W)
        e("s_add_u32 s46, s46, s%d" % sWave)
        e("s_lshl_b32 s46, s46, 6")
        e("v_mov_b32 v3, s46")
        e("s_waitcnt lgkmcnt(0)")
        for i in range(16):
            if i < n: e("v_mov_b32 v%d, s%d" % (8 + i, ST + 2 * i))
            elif i == 13:
                e("s_sub_u32 s76, s78, s76")
                e("v_mov_b32 v%d, s76" % (8 + i))
            elif i == 14: e("v_mov_b32 v%d, s41" % (8 + i))
            else: e("v_mov_b32 v%d, %d" % (8 + i, n))
        e("s_mov_b64 exec, 1")
        for i in range(4):
            e("global_store_dwordx4 v3, v[%d:%d], s[44:45] offset:%d" % (8 + 4 * i, 11 + 4 * i, 16 * i))
    lab("L_done")
    e("s_endpgm")

    out = HEADER
    out += "; Generated by gen/gen4.py (R=%s rot=%d flags=%s burst=%d RB=%d R0=%d hmap=%d touch=%d vpat=%d Re=%s)\n" % (R, rot, flags, burst, RB, R0, hmap, touch, vpat, Re)
    out += """;
"""
    out += "; @launch grid=(256,1,1) block=(%d,1,1) lds=%d\n" % (W * 64, LDS)
    out += '.amdgcn_target "amdgcn-amd-amdhsa--gfx950"\n.text\n.globl %s_kernel\n.p2align 8\n.type %s_kernel,@function\n%s_kernel:\n' % (NAME, NAME, NAME)
    out += "\n".join(L) + "\n"
    out += """.section .rodata,"a"
.p2align 6
.amdhsa_kernel %s_kernel
  .amdhsa_next_free_vgpr %d
  .amdhsa_next_free_sgpr %d
  .amdhsa_accum_offset %d
  .amdhsa_group_segment_fixed_size 0
  .amdhsa_kernarg_size 48
  .amdhsa_user_sgpr_count 2
  .amdhsa_user_sgpr_kernarg_segment_ptr 1
  .amdhsa_system_sgpr_workgroup_id_x 1
.end_amdhsa_kernel
""" % (NAME, NV, 84 if stamp else 48, NV)
    return out

if __name__ == "__main__":
    path = sys.argv[1]
    kw = {}
    for a in sys.argv[2:]:
        k, v = a.split("=")
        kw[k] = int(v) if (v.isdigit() and k not in ("R", "Re")) else v
    open(path, "w").write(gen(**kw))
```

```python
import sys, math, struct

NAME = "standalone__mha_softmax__sampling"
HEADER = open("cdna_kernels/%s.s.ref" % NAME).read().split("; Override launch")[0]

def f32bits(x):
    return struct.unpack("<I", struct.pack("<f", x))[0]

def gen(R="6", rot=56, flags="nt", stamp=0, ldsmin=0, burst=1, RB=19, R0=0, hmap=0, touch=0, cpf=0, lateinit=0, vpat=8, qdiag=0, Re="", oflags="", k32=0):
    VS = 128 if vpat == 8 else 256
    W = 4
    Rs = [int(x) for x in str(R).split("x")]
    Res = [int(x) for x in str(Re).split("x")] if Re else Rs
    RM = max(Rs + Res)
    assert RM <= 9 and 24 % len(Rs) == 0 and 24 % len(Res) == 0
    nlab = [0]
    L = []
    def e(s): L.append("    " + s)
    def lab(s): L.append(s + ":")
    def c(s): L.append("    ; " + s)
    HB = 786432
    LDS_ML = 65536
    LDS = max(LDS_ML + 2 * 4 * W * 4, ldsmin)
    vKo, vVo, vM0, vM1, vM, vL, vSW, vSR = 1, 2, 3, 4, 5, 6, 7, 62
    QB = 8
    T = 24
    EE, OO = 32, 36
    PF, AH0, AH1 = 40, 42, 44
    MC = 46
    FF = 47
    TMP = 48
    FR = 64
    ACC = 80
    RING = 128
    NV = 224
    BH0, BH1 = 32, 34
    RR = 36
    sWave, sKo, sVo, sCnt, sC, sSelLo, sSelHi = 28, 29, 30, 34, 35, 36, 37
    sU = 42
    ST = 48
    nst = [0]
    def stampit():
        if not stamp: return
        i = nst[0]; nst[0] += 1
        e("s_memrealtime s[%d:%d]" % (ST + 2 * i, ST + 2 * i + 1))
    def vr(b, n): return "v[%d:%d]" % (b, b + n - 1)
    def slot(i): return RING + 4 * (i % 24)
    USTEP, WOFF, SPAN = 12288, 3072, HB

    def window(n):
        ro, re_ = Rs[n % len(Rs)], Res[n % len(Res)]
        e("s_waitcnt vmcnt(%d)" % (max(ro, re_) - 1))
        if ro != re_:
            nlab[0] += 1
            e("s_cbranch_vcc%s L_w%d" % ("nz" if re_ > ro else "z", nlab[0]))
            e("s_waitcnt vmcnt(%d)" % (min(ro, re_) - 1))
            lab("L_w%d" % nlab[0])
    def adv(sreg, dst=None):
        dst = sreg if dst is None else dst
        e("s_add_u32 s%d, s%d, %d" % (dst, sreg, USTEP))
        e("s_cmp_eq_u32 s%d, %d" % (dst, SPAN))
        e("s_cselect_b32 s%d, 0, s%d" % (dst, dst))
    def kstep(n, wait=True):
        s = n % 3
        if wait: window(n)
        e("buffer_load_dwordx4 %s, v%d, s[16:19], s%d offen offset:%d %s" % (vr(slot(n), 4), vKo, sKo, s * 256, flags))
        if s == 2: adv(sKo)
    def vstep(m, wait=None):
        s = m % 3
        if wait is None: window(m)
        else: e("s_waitcnt vmcnt(%d)" % (wait - 1))
        e("buffer_load_dwordx4 %s, v%d, s[20:23], s%d offen offset:%d %s" % (vr(slot(m), 4), vVo, sVo, s * VS, flags))
        if s == 2: adv(sVo)

    def kcompute(o):
        x = o - (2 + RM)
        j, ph = (x // 3) % 8, x % 3
        t = T + j
        if ph == 0:
            e("v_mfma_f32_16x16x32_bf16 %s, %s, %s, 0" % (vr(EE, 4), vr(slot(3 * j), 4), vr(QB, 4)))
            e("v_mfma_f32_16x16x32_bf16 %s, %s, %s, %s" % (vr(EE, 4), vr(slot(3 * j + 1), 4), vr(QB + 4, 4), vr(EE, 4)))
            e("v_mfma_f32_16x16x32_bf16 %s, %s, %s, 0" % (vr(OO, 4), vr(slot(3 * j + 1), 4), vr(QB + 8, 4)))
            e("v_mfma_f32_16x16x32_bf16 %s, %s, %s, %s" % (vr(OO, 4), vr(slot(3 * j + 2), 4), vr(QB + 12, 4), vr(OO, 4)))
        elif ph == 1:
            e("s_nop 3")
            e("v_add_f32_dpp v%d, v%d, v%d row_shl:4 row_mask:0xf bank_mask:0x1" % (t, EE + 1, EE))
            e("s_nop 1")
            e("v_add_f32_dpp v%d, v%d, v%d row_shl:8 row_mask:0xf bank_mask:0x1" % (t, EE + 2, t))
            e("s_nop 1")
            e("v_add_f32_dpp v%d, v%d, v%d row_shl:12 row_mask:0xf bank_mask:0x1" % (t, EE + 3, t))
        else:
            e("v_add_f32_dpp v%d, v%d, v%d row_shr:8 row_mask:0xf bank_mask:0x4" % (t, OO, OO + 2))
            e("s_nop 1")
            e("v_add_f32_dpp v%d, v%d, v%d row_shr:4 row_mask:0xf bank_mask:0x4" % (t, OO + 1, t))
            e("s_nop 1")
            e("v_add_f32_dpp v%d, v%d, v%d row_shl:4 row_mask:0xf bank_mask:0x4" % (t, OO + 3, t))
            e("s_nop 1")
            e("v_mov_b32_dpp v%d, v%d row_shr:4 row_mask:0xf bank_mask:0xa" % (t, t))
            if j % 4 == 3:
                b = T + j - 3
                e("ds_write_b128 v%d, %s" % (vSW, vr(b, 4)))
                e("v_add_u32 v%d, 1024, v%d" % (vSW, vSW))
                e("v_max3_f32 v%d, v%d, v%d, v%d" % (vM, vM, b, b + 1))
                e("v_max3_f32 v%d, v%d, v%d, v%d" % (vM, vM, b + 2, b + 3))
    x, y, z = TMP, TMP + 1, TMP + 2
    def prep_exp(t):
        for u in range(4):
            e("v_fma_f32 v%d, v%d, s%d, -v%d" % (t + u, t + u, sC, MC))
        for u in range(4):
            e("v_exp_f32 v%d, v%d" % (t + u, t + u))
    def prep_pack(t):
        e("v_cvt_pk_bf16_f32 v%d, v%d, v%d" % (PF, t, t + 1))
        e("v_cvt_pk_bf16_f32 v%d, v%d, v%d" % (PF + 1, t + 2, t + 3))
        e("v_add_f32 v%d, v%d, v%d" % (x, t, t + 1))
        e("v_add_f32 v%d, v%d, v%d" % (y, t + 2, t + 3))
        e("v_add_f32 v%d, v%d, v%d" % (x, x, y))
        e("v_add_f32 v%d, v%d, v%d" % (vL, vL, x))
    def prep_mask(h0, h1):
        for p in range(2):
            e("v_and_b32 v%d, v%d, v%d" % (h0 + p, PF + p, vM0))
            e("v_and_b32 v%d, v%d, v%d" % (h1 + p, PF + p, vM1))
    def pv_perm(base, s, hh):
        fr = FR + 8 * hh
        if k32:
            for ii in range(2):
                i = 2 * hh + ii
                for h2 in range(2):
                    ee = 4 * h2 + i
                    tt, hi = ee >> 1, ee & 1
                    for p in range(2):
                        e("v_perm_b32 v%d, v%d, v%d, s%d" % (fr + 4 * ii + 2 * h2 + p, slot(base + 3 * (2 * p + 1) + s) + tt, slot(base + 3 * (2 * p) + s) + tt, sSelHi if hi else sSelLo))
            return
        for i in range(4):
            ee = 4 * hh + i
            tt, hi = ee >> 1, ee & 1
            for p in range(2):
                e("v_perm_b32 v%d, v%d, v%d, s%d" % (fr + 2 * i + p, slot(base + 3 * (2 * p + 1) + s) + tt, slot(base + 3 * (2 * p) + s) + tt, sSelHi if hi else sSelLo))
    def pv_mfma(s, hh, h0, h1):
        fr = FR + 8 * hh
        if k32:
            assert h1 == h0 + 2
            for ii in range(2):
                a = ACC + 16 * s + 4 * (2 * hh + ii)
                if ii == 1: e("s_nop 0")
                e("v_mfma_f32_16x16x32_bf16 %s, %s, %s, %s" % (vr(a, 4), vr(h0, 4), vr(fr + 4 * ii, 4), vr(a, 4)))
            return
        for i in range(4):
            a = ACC + 16 * s + 4 * i
            e("v_mfma_f32_16x16x16_bf16 %s, %s, %s, %s" % (vr(a, 4), vr(h1 if hh else h0, 2), vr(fr + 2 * i, 2), vr(a, 4)))

    c("uniform exit for extra workgroups")
    e("s_cmp_ge_u32 s2, 256")
    e("s_cbranch_scc1 L_done")
    e("s_load_dwordx8 s[4:11], s[0:1], 0        ; q, k, v, out")
    stampit()
    if stamp: e("s_memtime s[76:77]")
    if hmap:
        c("head = (wg&7)*32 + (wg>>3): the heads of one XCD are contiguous in memory (fewer pages per XCD)")
        e("s_and_b32 s38, s2, 7")
        e("s_lshl_b32 s38, s38, 5")
        e("s_lshr_b32 s39, s2, 3")
        e("s_or_b32 s3, s38, s39")
    else:
        e("s_mov_b32 s3, s2")
    c("lane decomposition")
    e("v_lshrrev_b32 v56, 6, v0")
    e("v_and_b32 v0, 63, v0                     ; lane")
    e("v_readfirstlane_b32 s%d, v56" % sWave)
    e("v_mul_u32_u24 v56, %d, v56               ; wave byte offset" % WOFF)
    c("K lane offset: m*768 + g*64 + v*16, m=(l>>2)&3, v=l&3, g=l>>4")
    e("v_bfe_u32 v57, v0, 2, 2")
    e("v_mul_u32_u24 v57, 768, v57")
    e("v_lshrrev_b32 v58, 4, v0")
    e("v_lshlrev_b32 v58, 6, v58")
    e("v_and_b32 v59, 3, v0")
    e("v_lshlrev_b32 v60, 4, v59")
    e("v_add3_u32 v%d, v57, v58, v60" % vKo)
    e("v_add_u32 v%d, v%d, v56" % (vKo, vKo))
    c("Q lane offsets: (l&3)*384 + (l>>2)*16 ; middle operand: lanes<32 +256, lanes>=32 -128")
    e("v_mul_u32_u24 v59, 384, v59")
    e("v_lshrrev_b32 v58, 2, v0")
    e("v_lshlrev_b32 v58, 4, v58")
    e("v_add_u32 v61, v59, v58")
    e("v_lshrrev_b32 v58, 5, v0")
    e("v_mul_u32_u24 v58, 384, v58")
    e("v_sub_u32 v55, v61, v58")
    e("s_mul_i32 s38, s3, %d                ; head byte offset (K,V), < 2^28" % HB)
    e("s_mul_i32 s40, s3, 1536")
    e("s_mov_b32 s14, 1536")
    e("s_mov_b32 s15, 0x20000")
    e("s_mov_b32 s18, %d" % HB)
    e("s_mov_b32 s19, 0x20000")
    c("rotated start unit")
    e("s_mul_i32 s39, s3, %d" % rot)
    e("s_and_b32 s39, s39, 63")
    e("s_mul_i32 s%d, s39, %d" % (sKo, USTEP))
    e("s_mov_b32 s%d, s%d" % (sVo, sKo))
    e("v_add_u32 v55, 256, v55")
    e("s_waitcnt lgkmcnt(0)")
    stampit()
    e("s_add_u32 s12, s4, s40")
    e("s_addc_u32 s13, s5, 0")
    e("s_add_u32 s16, s6, s38")
    e("s_addc_u32 s17, s7, 0")
    if qdiag == 1:
        kstep(0, wait=False)
        e("s_waitcnt vmcnt(0)")
        stampit()
        e("buffer_load_dwordx4 %s, v61, s[12:15], 0 offen" % vr(QB, 4))
        e("s_waitcnt vmcnt(0)")
        stampit()
        e("buffer_load_dwordx4 %s, v55, s[12:15], 0 offen" % vr(QB + 4, 4))
        kstep(1, wait=False)
        e("s_waitcnt vmcnt(0)")
        stampit()
        e("buffer_load_dwordx4 %s, v61, s[12:15], 0 offen offset:128" % vr(QB + 12, 4))
    elif qdiag == 2:
        e("buffer_load_dwordx4 %s, v61, s[12:15], 0 offen" % vr(QB, 4))
        kstep(0, wait=False)
        e("s_waitcnt vmcnt(1)")
        stampit()
        e("s_waitcnt vmcnt(0)")
        stampit()
        e("buffer_load_dwordx4 %s, v55, s[12:15], 0 offen" % vr(QB + 4, 4))
        kstep(1, wait=False)
        e("s_waitcnt vmcnt(0)")
        stampit()
        e("buffer_load_dwordx4 %s, v61, s[12:15], 0 offen offset:128" % vr(QB + 12, 4))
    else:
        e("buffer_load_dwordx4 %s, v61, s[12:15], 0 offen" % vr(QB, 4))
        kstep(0, wait=False)
        e("buffer_load_dwordx4 %s, v55, s[12:15], 0 offen" % vr(QB + 4, 4))
        kstep(1, wait=False)
        e("buffer_load_dwordx4 %s, v61, s[12:15], 0 offen offset:128" % vr(QB + 12, 4))
    NP = max(RM, R0)
    assert NP <= RM + 2
    for n in range(2, NP):
        kstep(n, wait=False)
    if cpf:
        c("pull the rest of this kernel's code into L2 (one line per lane), wave 3 only")
        e("s_cmp_lg_u32 s%d, 3" % sWave)
        e("s_cbranch_scc1 L_nopf")
        e("s_getpc_b64 s[46:47]")
        lab("L_pf")
        e("v_lshlrev_b32 v57, 7, v0")
        e("v_min_u32 v57, L_done-L_pf, v57")
        e("global_load_dword v59, v57, s[46:47]")
        lab("L_nopf")
    e("s_mov_b32 s22, %d" % HB)
    e("s_mov_b32 s23, 0x20000")
    e("s_mov_b32 s26, 1536")
    e("s_mov_b32 s27, 0x20000")
    e("s_add_u32 s20, s8, s38")
    e("s_addc_u32 s21, s9, 0")
    e("s_add_u32 s24, s10, s40")
    e("s_addc_u32 s25, s11, 0")
    if vpat == 8:
        c("V lane offset: (l>>3)*384 + (l&7)*16")
        e("v_lshrrev_b32 v57, 3, v0")
        e("v_mul_u32_u24 v57, 384, v57")
        e("v_and_b32 v58, 7, v0")
    else:
        c("V lane offset: (l>>4)*768 + (l&15)*16")
        e("v_lshrrev_b32 v57, 4, v0")
        e("v_mul_u32_u24 v57, 768, v57")
        e("v_and_b32 v58, 15, v0")
    e("v_lshlrev_b32 v58, 4, v58")
    e("v_add3_u32 v%d, v57, v58, v56" % vVo)
    c("masks on lane bit 2")
    e("v_bfe_i32 v%d, v0, 2, 1                   ; -1 where bit2 set" % vM1)
    e("v_not_b32 v%d, v%d" % (vM0, vM1))
    e("v_mov_b32 v%d, 0xff800000                 ; m = -inf" % vM)
    e("v_mov_b32 v%d, 0" % vL)
    c("LDS address of this wave's score area: wave*16384 + lane*16")
    e("s_lshl_b32 s39, s%d, 14" % sWave)
    e("v_lshlrev_b32 v%d, 4, v0" % vSW)
    e("v_add_u32 v%d, s39, v%d" % (vSW, vSW))
    e("v_mov_b32 v%d, v%d" % (vSR, vSW))
    e("v_mov_b32 v63, v%d" % vSW)
    e("s_mov_b32 s%d, 0x%08x" % (sC, f32bits(192 ** -0.5 * math.log2(math.e))))
    if Re:
        c("vcc = all ones on even XCDs (selects the load window; speed only)")
        e("s_getreg_b32 s39, hwreg(HW_REG_XCC_ID)")
        e("s_and_b32 s39, s39, 1")
        e("s_cmp_eq_u32 s39, 0")
        e("s_cselect_b64 vcc, -1, 0")
    e("s_mov_b32 s%d, 0x05040100" % sSelLo)
    e("s_mov_b32 s%d, 0x07060302" % sSelHi)
    if not lateinit:
        for i in range(48):
            e("v_mov_b32 v%d, 0" % (ACC + i))
    e("v_ashrrev_i32 v57, 5, v0")
    e("v_sub_u32 v57, 0, v57")
    e("v_not_b32 v58, v57")
    e("s_mov_b32 s%d, 8" % sCnt)
    for n in range(NP, RM + 2):
        kstep(n)
    c("split the middle Q operand (its load is older than K load 2..): lanes<32 -> even keys, lanes>=32 -> odd keys")
    e("s_waitcnt vmcnt(%d)" % RM)
    for i in range(4):
        e("v_and_b32 v%d, v%d, v57" % (QB + 8 + i, QB + 4 + i))
    for i in range(4):
        e("v_and_b32 v%d, v%d, v58" % (QB + 4 + i, QB + 4 + i))
    if touch:
        c("address-translation warm-up: first and last line of this head's V (and K) range")
        e("v_mul_u32_u24 v57, %d, v0" % (HB - 128))
        e("s_mov_b64 exec, 3")
        if touch & 1:
            e("s_cmp_eq_u32 s%d, 1" % sWave)
            e("s_cbranch_scc0 L_t1")
            e("buffer_load_dword v59, v57, s[16:19], 0 offen nt")
            lab("L_t1")
        if touch & 2:
            e("s_cmp_eq_u32 s%d, 2" % sWave)
            e("s_cbranch_scc0 L_t2")
            e("buffer_load_dword v59, v57, s[20:23], 0 offen nt")
            lab("L_t2")
        e("s_mov_b64 exec, -1")
    stampit()
    e("s_branch L_kmid")

    lab("L_kloop")
    for o in range(24):
        if o == RM + 2:
            lab("L_kmid")
        kstep(o)
        kcompute(o)
    e("s_sub_u32 s%d, s%d, 1" % (sCnt, sCnt))
    e("s_cmp_lg_u32 s%d, 0" % sCnt)
    e("s_cbranch_scc1 L_kloop")
    stampit()

    c("---- transition: first V loads, K tail, final max ----")
    c0 = RM + 5
    for m in range(c0):
        vstep(m)
        if lateinit:
            if m < 8:
                for i in range(6 * m, 6 * m + 6):
                    e("v_mov_b32 v%d, 0" % (ACC + i))
        if m <= RM + 1:
            kcompute(m)
        elif m == RM + 2:
            e("v_max_f32_dpp v%d, v%d, v%d row_ror:8 row_mask:0xf bank_mask:0xf" % (vM, vM, vM))
            e("v_mov_b32 v%d, v%d" % (y, vM))
            e("s_nop 1")
            e("v_permlane16_swap_b32 v%d, v%d" % (vM, y))
        elif m == RM + 3:
            e("v_max_f32 v%d, v%d, v%d" % (vM, vM, y))
            e("v_mov_b32 v%d, v%d" % (y, vM))
            e("s_nop 1")
            e("v_permlane32_swap_b32 v%d, v%d" % (vM, y))
        else:
            e("v_max_f32 v%d, v%d, v%d                  ; true max over this wave's keys (per q = lane&3)" % (vM, vM, y))
            e("v_mul_f32 v%d, s%d, v%d                  ; m*c" % (MC, sC, vM))
    e("s_mov_b32 s%d, 7" % sCnt)

    lab("L_vloop")
    for k in range(24):
        vstep(c0 + k)
        half, kk = divmod(k, 12)
        base = 12 * half
        if kk == 0:
            e("ds_read_b128 %s, v%d offset:%d" % (vr(T, 4), vSR, 1024 * half))
            if half == 1:
                e("v_add_u32 v%d, 2048, v%d" % (vSR, vSR))
        elif kk == 1:
            e("s_waitcnt lgkmcnt(0)")
            prep_exp(T)
        elif kk == 2:
            prep_pack(T)
        elif kk == 3:
            prep_mask(AH0, AH1)
        elif kk >= 6:
            s, hh = divmod(kk - 6, 2)
            pv_perm(base, s, hh)
            pv_mfma(s, hh, AH0, AH1)
    e("s_sub_u32 s%d, s%d, 1" % (sCnt, sCnt))
    e("s_cmp_lg_u32 s%d, 0" % sCnt)
    e("s_cbranch_scc1 L_vloop")
    stampit()

    c("---- last two groups (14, 15): issue the remaining loads, group 15 in s-major order ----")
    m0 = 168 + c0
    e("ds_read_b128 %s, v%d" % (vr(T, 4), vSR))
    e("ds_read_b128 %s, v%d offset:1024" % (vr(T + 4, 4), vSR))
    wn = RB if burst else None
    work = []
    def w_exp14(): e("s_waitcnt lgkmcnt(1)"); prep_exp(T)
    def w_pack14(): prep_pack(T); prep_mask(AH0, AH1)
    def w_exp15(): e("s_waitcnt lgkmcnt(0)"); prep_exp(T + 4)
    def w_pack15(): prep_pack(T + 4); prep_mask(BH0, BH1)
    def w_l1():
        e("v_add_f32_dpp v%d, v%d, v%d row_ror:8 row_mask:0xf bank_mask:0xf" % (vL, vL, vL))
        e("v_mov_b32 v%d, v%d" % (y, vL))
        e("s_nop 1")
        e("v_permlane16_swap_b32 v%d, v%d" % (vL, y))
        e("s_nop 1")
        e("v_add_f32 v%d, v%d, v%d" % (vL, vL, y))
    def w_l2():
        e("v_mov_b32 v%d, v%d" % (y, vL))
        e("s_nop 1")
        e("v_permlane32_swap_b32 v%d, v%d" % (vL, y))
        e("s_nop 1")
        e("v_add_f32 v%d, v%d, v%d" % (vL, vL, y))
        c("m/l table: LDS_ML + ((l&3)*4 + wave)*4")
        e("v_and_b32 v%d, 3, v0" % z)
        e("v_lshlrev_b32 v%d, 4, v%d" % (z, z))
        e("s_lshl_b32 s38, s%d, 2" % sWave)
        e("s_add_u32 s38, s38, %d" % LDS_ML)
        e("v_add_u32 v%d, s38, v%d" % (z, z))
        e("ds_write_b32 v%d, v%d" % (z, vM))
        e("ds_write_b32 v%d, v%d offset:64" % (z, vL))
    def w_addr():
        c("output-side lane roles: q = 2*bit3 + bit5, h = bit4, c = l&7")
        e("v_bfe_u32 v8, v0, 3, 1")
        e("v_lshlrev_b32 v8, 1, v8")
        e("v_lshrrev_b32 v9, 5, v0")
        e("v_add_u32 v8, v8, v9                     ; q")
        e("v_lshlrev_b32 v9, 4, v8")
        e("v_add_u32 v11, s38, v9")
        e("v_add_u32 v9, %d, v9                  ; row of the m/l table" % LDS_ML)
        e("v_mul_u32_u24 v10, 384, v8")
        e("v_and_b32 v12, 7, v0")
        e("v_lshlrev_b32 v12, 4, v12")
        e("v_bfe_u32 v13, v0, 4, 1")
        e("v_lshlrev_b32 v13, 3, v13")
        e("v_add3_u32 v10, v10, v12, v13")
        e("s_lshl_b32 s39, s%d, 10" % sWave)
        e("v_lshlrev_b32 v12, 4, v0")
        e("v_add_u32 v12, s39, v12                  ; s*1024 + l*16")
        e("s_lshl_b32 s39, s%d, 7" % sWave)
    MW, LW = 16, 20
    def w_bar():
        e("s_waitcnt lgkmcnt(0)")
        e("s_barrier")
        e("ds_read_b128 %s, v9" % vr(MW, 4))
        e("ds_read_b128 %s, v9 offset:64" % vr(LW, 4))
        e("ds_read_b32 v14, v11")
    def w_f():
        c("scale factor f = exp2((m_own - M)*c) / L")
        e("s_waitcnt lgkmcnt(0)")
        e("v_max_f32 v13, v%d, v%d" % (MW, MW + 1))
        e("v_max3_f32 v13, v13, v%d, v%d" % (MW + 2, MW + 3))
        for w in range(W):
            e("v_sub_f32 v%d, v%d, v13" % (MW + w, MW + w))
        e("v_sub_f32 v14, v14, v13")
        for w in range(W):
            e("v_mul_f32 v%d, s%d, v%d" % (MW + w, sC, MW + w))
        e("v_mul_f32 v14, s%d, v14" % sC)
        for w in range(W):
            e("v_exp_f32 v%d, v%d" % (MW + w, MW + w))
        e("v_exp_f32 v14, v14")
        e("v_mul_f32 v15, v%d, v%d" % (MW, LW))
        for w in range(1, W):
            e("v_fmac_f32 v15, v%d, v%d" % (MW + w, LW + w))
        e("v_rcp_f32 v15, v15")
        e("s_nop 0")
        e("v_mul_f32 v%d, v14, v15" % FF)
    if burst == 2:
        done15 = [m - 180 for m in range(180, m0)]
        assert len(done15) <= 2
        order = [(s, u) for u in range(4) for s in range(2) if not (u == 0 and s in done15)] + [(2, u) for u in range(4)]
        steps = [("v", m) for m in range(m0, 180)] + [("g", su) for su in order]
        RT = RB if RB < 19 else None
        RW = RM if RT is None else max(RT, RM)
        first14 = min(179 + RW - m0, len(steps))
        pre = [[w_exp14], [w_pack14, w_exp15], [w_pack15, w_l1], [w_l2, w_addr], [w_bar], [w_f]]
        sl14 = [(s, hh) for s in range(3) for hh in range(2)]
        have_u = False
        for idx, (kind, a) in enumerate(steps):
            if kind == "v":
                vstep(a, RT)
            else:
                if not have_u:
                    e("s_mov_b32 s%d, s%d" % (sU, sVo))
                    for u in range(1, 4):
                        adv(sU + u - 1, sU + u)
                    have_u = True
                s, u = a
                if RT is None: window(m0 + idx)
                else: e("s_waitcnt vmcnt(%d)" % (RT - 1))
                e("buffer_load_dwordx4 %s, v%d, s[20:23], s%d offen offset:%d %s" % (vr(slot(12 + 3 * u + s), 4), vVo, sU + u, s * VS, flags))
            if pre:
                for f in pre.pop(0): f()
            elif idx >= first14 and sl14:
                s, hh = sl14.pop(0)
                pv_perm(0, s, hh)
                pv_mfma(s, hh, AH0, AH1)
        assert not pre
        if sl14:
            e("s_waitcnt vmcnt(%d)" % len(order))
            for s, hh in sl14:
                pv_perm(0, s, hh)
                pv_mfma(s, hh, AH0, AH1)
        lefts = [4, 4, 0]
    else:
        work = [w_exp14, w_pack14, w_exp15, w_pack15, w_l1, w_l2, w_addr]
        rem = list(range(m0, 180))
        for m in rem:
            vstep(m, wn)
        done15 = [m - 180 for m in range(180, m0)]
        assert len(done15) <= 2
        e("s_mov_b32 s%d, s%d" % (sU, sVo))
        for u in range(1, 4):
            adv(sU + u - 1, sU + u)
        order = [(s, u) for s in range(3) for u in range(4) if not (u == 0 and s in done15)]
        wi = 0
        for idx, (s, u) in enumerate(order):
            if burst: e("s_waitcnt vmcnt(%d)" % (RB - 1))
            else: e("s_waitcnt vmcnt(%d)" % (Rs[idx % len(Rs)] - 1))
            e("buffer_load_dwordx4 %s, v%d, s[20:23], s%d offen offset:%d %s" % (vr(slot(12 + 3 * u + s), 4), vVo, sU + u, s * VS, flags))
            if not burst and wi < len(work):
                work[wi](); wi += 1
        while wi < len(work):
            work[wi](); wi += 1
        w_bar()
        c("group 14 (all its loads are older than the group-15 loads issued above)")
        n15 = len(order)
        e("s_waitcnt vmcnt(%d)" % n15)
        for s in range(3):
            for hh in range(2):
                pv_perm(0, s, hh)
                pv_mfma(s, hh, AH0, AH1)
        w_f()
        lefts = [len([1 for (s2, u) in order if s2 > s]) for s in range(3)]
    c("group 15, one s at a time, each followed by the in-wave reduction of its accumulators")
    for s in range(3):
        e("s_waitcnt vmcnt(%d)" % lefts[s])
        if s == 2: stampit()
        pv_perm(12, s, 0)
        pv_mfma(s, 0, BH0, BH1)
        pv_perm(12, s, 1)
        pv_mfma(s, 1, BH0, BH1)
        if not k32: e("s_nop 4")
        for i in range(4):
            a = ACC + 16 * s + 4 * i
            if i == 3 and not k32: e("s_nop 0")
            if i == 2 and k32: e("s_nop 1")
            e("v_permlane32_swap_b32 v%d, v%d" % (a, a + 1))
            e("v_permlane32_swap_b32 v%d, v%d" % (a + 2, a + 3))
        if vpat == 8:
            thirds = [(s, s, s, False)]
        else:
            thirds = {0: [], 1: [(0, 0, 1, False)], 2: [(1, 0, 2, True), (2, 1, 2, False)]}[s]
        for (t3, se, so, flip) in thirds:
            OUTR = 24 + 4 * (t3 & 1)
            for i in range(4):
                ae, ao = ACC + 16 * se + 4 * i, ACC + 16 * so + 4 * i
                if not flip: e("v_add_f32_dpp v%d, v%d, v%d row_ror:8 row_mask:0xf bank_mask:0x3" % (RR + i, ao + 1, ae))
                else:        e("v_add_f32_dpp v%d, v%d, v%d row_ror:8 row_mask:0xf bank_mask:0x3" % (RR + i, ae, ao + 1))
            for i in range(4):
                ae, ao = ACC + 16 * se + 4 * i, ACC + 16 * so + 4 * i
                if not flip: e("v_add_f32_dpp v%d, v%d, v%d row_ror:8 row_mask:0xf bank_mask:0xc" % (RR + i, ae + 2, ao + 3))
                else:        e("v_add_f32_dpp v%d, v%d, v%d row_ror:8 row_mask:0xf bank_mask:0xc" % (RR + i, ao + 3, ae + 2))
            for i in range(4):
                e("v_mul_f32 v%d, v%d, v%d" % (OUTR + i, RR + i, FF))
            e("ds_write_b128 v63, %s offset:%d" % (vr(OUTR, 4), t3 * 1024))
    e("s_waitcnt lgkmcnt(0)")
    stampit()
    e("s_barrier")
    e("s_cmp_ge_u32 s%d, 3" % sWave)
    e("s_cbranch_scc1 L_fin")
    PART = FR
    for w in range(W):
        e("ds_read_b128 %s, v12 offset:%d" % (vr(PART + 4 * w, 4), w * 16384))
    e("s_waitcnt lgkmcnt(2)")
    for i in range(4):
        e("v_add_f32 v%d, v%d, v%d" % (PART + i, PART + i, PART + 4 + i))
    e("s_waitcnt lgkmcnt(0)")
    for i in range(4):
        e("v_add_f32 v%d, v%d, v%d" % (PART + 8 + i, PART + 8 + i, PART + 12 + i))
    for i in range(4):
        e("v_add_f32 v%d, v%d, v%d" % (PART + i, PART + i, PART + 8 + i))
    e("v_cvt_pk_bf16_f32 v20, v%d, v%d" % (PART, PART + 1))
    e("v_cvt_pk_bf16_f32 v21, v%d, v%d" % (PART + 2, PART + 3))
    e("buffer_store_dwordx2 v[20:21], v10, s[24:27], s39 offen %s" % oflags)
    lab("L_fin")
    if stamp:
        stampit()
        e("s_waitcnt vmcnt(0)")
        stampit()
        e("s_memtime s[78:79]")
        n = nst[0]
        assert n <= 13
        e("s_load_dwordx2 s[44:45], s[0:1], 40")
        e("s_getreg_b32 s41, hwreg(HW_REG_XCC_ID)")
        e("s_mul_i32 s46, s2, %d" % W)
        e("s_add_u32 s46, s46, s%d" % sWave)
        e("s_lshl_b32 s46, s46, 6")
        e("v_mov_b32 v3, s46")
        e("s_waitcnt lgkmcnt(0)")
        for i in range(16):
            if i < n: e("v_mov_b32 v%d, s%d" % (8 + i, ST + 2 * i))
            elif i == 13:
                e("s_sub_u32 s76, s78, s76")
                e("v_mov_b32 v%d, s76" % (8 + i))
            elif i == 14: e("v_mov_b32 v%d, s41" % (8 + i))
            else: e("v_mov_b32 v%d, %d" % (8 + i, n))
        e("s_mov_b64 exec, 1")
        for i in range(4):
            e("global_store_dwordx4 v3, v[%d:%d], s[44:45] offset:%d" % (8 + 4 * i, 11 + 4 * i, 16 * i))
    lab("L_done")
    e("s_endpgm")

    out = HEADER
    out += "; Generated by gen/gen4.py (R=%s rot=%d flags=%s burst=%d RB=%d R0=%d hmap=%d touch=%d vpat=%d Re=%s k32=%d)\n" % (R, rot, flags, burst, RB, R0, hmap, touch, vpat, Re, k32)
    out += """;
"""
    out += "; @launch grid=(256,1,1) block=(%d,1,1) lds=%d\n" % (W * 64, LDS)
    out += '.amdgcn_target "amdgcn-amd-amdhsa--gfx950"\n.text\n.globl %s_kernel\n.p2align 8\n.type %s_kernel,@function\n%s_kernel:\n' % (NAME, NAME, NAME)
    out += "\n".join(L) + "\n"
    out += """.section .rodata,"a"
.p2align 6
.amdhsa_kernel %s_kernel
  .amdhsa_next_free_vgpr %d
  .amdhsa_next_free_sgpr %d
  .amdhsa_accum_offset %d
  .amdhsa_group_segment_fixed_size 0
  .amdhsa_kernarg_size 48
  .amdhsa_user_sgpr_count 2
  .amdhsa_user_sgpr_kernarg_segment_ptr 1
  .amdhsa_system_sgpr_workgroup_id_x 1
.end_amdhsa_kernel
""" % (NAME, NV, 84 if stamp else 48, NV)
    return out

if __name__ == "__main__":
    path = sys.argv[1]
    kw = {}
    for a in sys.argv[2:]:
        k, v = a.split("=")
        kw[k] = int(v) if (v.isdigit() and k not in ("R", "Re")) else v
    open(path, "w").write(gen(**kw))
```
